```python
import torch

def _softmax(x, axis=-1):
    return torch.softmax(x, dim=axis)
def _gelu(x):
    return torch.nn.functional.gelu(x, approximate="tanh")
def _silu(x):
    return torch.nn.functional.silu(x)
def _sigmoid(x):
    return torch.sigmoid(x)
def _layernorm(x, axis=-1, eps=1e-5):
    m = x.mean(dim=axis, keepdim=True)
    v = x.var(dim=axis, keepdim=True, unbiased=False)
    return (x - m) / torch.sqrt(v + eps)
def _scatter_add(tgt, idx, src, axis=0):
    return tgt.clone().index_add_(axis, idx, src)
def _segment_sum(src, seg, n):
    out = torch.zeros((n,) + src.shape[1:], dtype=src.dtype)
    return out.index_add_(0, seg, src)
def _pad(x, pw):
    flat = tuple(v for pair in reversed(pw) for v in pair)
    return torch.nn.functional.pad(x, flat)

kernel_name = 'standalone__linear_kernel_hedgehog__prompt'

def setup_inputs():

    _w = (lambda a: (lambda t: t.to(torch.bfloat16) if t.is_floating_point() else t)(torch.as_tensor(a)))
    B, S, D, H = 1, 2048, 640, 32
    Dh = D // H
    return {
        "x": _w((lambda *s: torch.randn(*s, dtype=torch.bfloat16) * 0.4)(B, S, D)),
        "wqkv": _w((lambda *s: torch.randn(*s, dtype=torch.bfloat16) * 0.4)(D, 3 * D)),
        "w_phi": _w((lambda *s: torch.randn(*s, dtype=torch.bfloat16) * 0.4)(H, Dh, Dh) * (Dh ** -0.5)),
        "wo": _w((lambda *s: torch.randn(*s, dtype=torch.bfloat16) * 0.05)(D, D)),
    }

def reference(x, wqkv, w_phi, wo):
    B, S, D = x.shape
    H = 32; Dh = D // H
    qkv = (lambda x, *d: x.permute(*d))((x @ wqkv).reshape(B, S, 3, H, Dh), 2, 0, 3, 1, 4)
    q, k, v = qkv[0], qkv[1], qkv[2]
    pq = torch.einsum("bhsd,hdf->bhsf", q, w_phi)
    pk = torch.einsum("bhsd,hdf->bhsf", k, w_phi)
    phi_q = torch.concatenate([_softmax(pq, axis=-1), _softmax(-pq, axis=-1)], axis=-1)
    phi_k = torch.concatenate([_softmax(pk, axis=-1), _softmax(-pk, axis=-1)], axis=-1)
    kv = torch.einsum("bhsf,bhsd->bhfd", phi_k, v)
    z  = torch.einsum("bhsf->bhf", phi_k)
    num = torch.einsum("bhqf,bhfd->bhqd", phi_q, kv)
    den = torch.einsum("bhqf,bhf->bhq", phi_q, z)[..., None] + 1e-6
    o = num / den
    return (lambda x, *d: x.permute(*d))(o, 0, 2, 1, 3).reshape(B, S, D) @ wo
```

```python
import re

TRANS = ("v_exp_f32", "v_log_f32", "v_rcp_f32", "v_rsq_f32", "v_sqrt_f32", "v_sin_f32", "v_cos_f32", "v_rcp_iflag_f32")

def regs_of(tok):
    tok = tok.strip()
    m = re.fullmatch(r"(-?)(?:abs\()?([vas])\[(\d+):(\d+)\]\)?", tok)
    if m:
        return [f"{m.group(2)}{i}" for i in range(int(m.group(3)), int(m.group(4)) + 1)]
    m = re.fullmatch(r"(-?)(?:abs\()?([vas])(\d+)\)?", tok)
    if m:
        return [f"{m.group(2)}{m.group(3)}"]
    if tok in ("vcc", "exec", "m0", "scc"):
        return [tok]
    if tok in ("vcc_lo", "vcc_hi"): return ["vcc"]
    if tok in ("exec_lo", "exec_hi"): return ["exec"]
    return []

class Ins:
    __slots__ = ("text", "mn", "kind", "w", "r", "trans", "srcC", "wide_store")
    def __init__(self, text):
        self.text = text
        t = text.split(";")[0].strip()
        self.w = set(); self.r = set(); self.trans = False; self.srcC = set(); self.wide_store = False
        if not t or t.endswith(":") or t.startswith("."):
            self.mn = ""; self.kind = "label" if t.endswith(":") else "dir"; return
        parts = t.split(None, 1)
        mn = parts[0]; self.mn = mn
        ops = []
        if len(parts) > 1:
            ops = [o.strip() for o in re.split(r",(?![^\[]*\])", parts[1])]
            last = ops[-1].split()
            if last:
                ops[-1] = last[0]
                mods = last[1:]
            else:
                mods = []
        else:
            mods = []
        R = [regs_of(o) for o in ops]
        def rd(lst):
            for x in lst: self.r.update(x)
        if mn.startswith("v_mfma"):
            self.kind = "mfma"; self.w.update(R[0]); rd(R[1:]); self.srcC = set(R[3])
        elif mn.startswith("v_"):
            self.kind = "valu"; self.trans = mn in TRANS or mn.replace("_e32", "").replace("_e64", "") in TRANS
            self.w.update(R[0]); rd(R[1:])
            if mn.startswith("v_fmac") or mn.startswith("v_dot2c") or mn.startswith("v_writelane") or "swap" in mn:
                self.r.update(R[0])
            if "swap" in mn: self.w.update(R[1])
            if mn.startswith("v_cndmask") and len(ops) == 3: self.r.add("vcc")
            if mn.startswith("v_cmpx"): self.w.add("exec")
        elif mn.startswith("ds_read") or mn.startswith("ds_bpermute") or mn.startswith("ds_swizzle"):
            self.kind = "dsr"; self.w.update(R[0]); rd(R[1:])
        elif mn.startswith("ds_"):
            self.kind = "dsw"; rd(R)
        elif mn.startswith("buffer_load") or mn.startswith("global_load"):
            if "lds" in mods or "_lds_" in mn:
                self.kind = "dma"; rd(R); self.r.add("m0")
            else:
                self.kind = "vld"; self.w.update(R[0]); rd(R[1:])
        elif mn.startswith("buffer_store") or mn.startswith("global_store") or mn.startswith("buffer_atomic") or mn.startswith("global_atomic"):
            self.kind = "vst"; rd(R)
            self.wide_store = mn.endswith("x4") or mn.endswith("x3")
        elif mn.startswith("s_"):
            self.kind = "salu"
            if mn in ("s_waitcnt", "s_barrier", "s_nop", "s_endpgm", "s_sleep", "s_setprio", "s_branch") or mn.startswith("s_cbranch"):
                if mn == "s_nop": self.kind = "nop"
                if mn.startswith("s_cbranch_vcc"): self.r.add("vcc")
                if mn.startswith("s_cbranch_exec"): self.r.add("exec")
                if mn.startswith("s_cbranch_scc"): self.r.add("scc")
            elif mn.startswith("s_cmp") or mn.startswith("s_bitcmp"):
                rd(R); self.w.add("scc")
            else:
                self.w.update(R[0]); rd(R[1:]); self.w.add("scc")
                if "saveexec" in mn: self.w.add("exec"); self.r.add("exec")
        else:
            raise ValueError("unknown instruction: " + text)
    def states(self):
        if self.kind in ("label", "dir"): return 0
        if self.kind == "nop": return int(self.text.split()[1], 0) + 1
        return 1

def isv(r): return r[0] in "va" and r[1:].isdigit()
def iss(r): return (r[0] == "s" and r[1:].isdigit()) or r == "vcc"

def need(prev, cur):
    n = 0
    pw, pr = prev.w, prev.r
    if prev.kind == "valu":
        vw = {x for x in pw if isv(x)}
        sw = {x for x in pw if iss(x)}
        if cur.kind == "mfma" and vw & cur.r: n = max(n, 2)
        if prev.trans and cur.kind in ("valu",) and not cur.trans and vw & cur.r: n = max(n, 1)
        if prev.trans and cur.kind in ("valu",) and cur.trans and vw & cur.r: n = max(n, 1)
        if cur.kind == "valu" and sw & cur.r:
            n = max(n, 4 if cur.mn.startswith(("v_readlane", "v_writelane")) else 2)
        if cur.kind in ("vld", "vst", "dma") and sw & cur.r: n = max(n, 5)
        if cur.kind == "salu" and sw & cur.r: n = max(n, 2)
        if cur.kind == "valu" and cur.mn.startswith(("v_readfirstlane", "v_readlane")) and vw & cur.r: n = max(n, 1)
        if cur.kind == "valu" and ("permlane" in cur.mn or "dpp" in cur.text or "row_" in cur.text or "quad_perm" in cur.text) and vw & cur.r: n = max(n, 2)
        if "exec" in pw and cur.kind == "mfma": n = max(n, 4)
    if prev.kind == "mfma":
        d = pw
        if cur.kind == "mfma":
            ab = cur.r - cur.srcC
            if d & ab: n = max(n, 8)
            if d & cur.srcC and d != cur.srcC: n = max(n, 6)
            if d & cur.w and d != cur.w: n = max(n, 6)
            if d & cur.w and d == cur.w and not (cur.srcC == d): n = max(n, 6)
        elif cur.kind in ("valu", "dsr", "dsw", "vld", "vst", "dma"):
            if d & (cur.r | cur.w): n = max(n, 8)
        if cur.kind == "valu" and prev.srcC & cur.w: n = max(n, 3)
        if cur.kind in ("dsr", "vld") and prev.srcC & cur.w: n = max(n, 3)
    if prev.kind == "salu" and "m0" in pw and cur.kind == "dma": n = max(n, 1)
    if prev.kind == "vst" and prev.wide_store and cur.kind == "valu":
        if {x for x in pr if isv(x)} & cur.w: n = max(n, 2)
    return n

class Prog:
    def __init__(self):
        self.ins = []
        self.vm = []
        self.lg = []
    def __call__(self, text):
        for line in text.split("\n"):
            line = line.strip()
            if line: self.ins.append(Ins(line))
    def c(self, text):
        i = Ins(""); i.text = "; " + text; self.ins.append(i)
    def vmem(self, text, tag, optional=False):
        self(text); self.vm.append((tag, optional))
    def vm_wait(self, *tags, extra=""):
        last = -1
        for i, (t, o) in enumerate(self.vm):
            if t in tags: last = i
        if last < 0:
            if extra: self("s_waitcnt " + extra)
            return
        n = sum(1 for (t, o) in self.vm[last + 1:] if not o)
        assert n <= 63, n
        self(f"s_waitcnt vmcnt({n})" + (" " + extra if extra else ""))
        self.vm = self.vm[last + 1:]
    def vm_drain(self):
        self("s_waitcnt vmcnt(0)"); self.vm = []
    def vm_out(self): return len(self.vm)
    def lds(self, text, tag=None):
        self(text); self.lg.append(tag)
    def lg_wait(self, *tags):
        last = -1
        for i, t in enumerate(self.lg):
            if t in tags: last = i
        if last < 0: return
        n = len(self.lg) - 1 - last
        if n > 15: n = 15
        self.lg = self.lg[last + 1:]
        self(f"s_waitcnt lgkmcnt({n})")
    def lg_drain(self):
        self("s_waitcnt lgkmcnt(0)"); self.lg = []
    def barrier(self):
        self("s_barrier")
    def render(self):
        out = []
        hist = []
        pos = 0
        nins = 0
        for ins in self.ins:
            if ins.kind in ("label", "dir"):
                out.append(ins.text if ins.kind == "label" or ins.text.startswith((".", ";")) else ins.text); continue
            req = 0
            for (p, ppos) in reversed(hist):
                dist = pos - ppos - 1
                if dist >= 10: break
                k = need(p, ins) - dist
                if k > req: req = k
            if req > 0:
                out.append(f"  s_nop {req-1}"); pos += req; nins += 1
            out.append("  " + ins.text)
            hist.append((ins, pos)); pos += ins.states()
            if len(hist) > 24: hist.pop(0)
        return "\n".join(out), nins
```

```python
import sys, argparse
from asmlib import Prog

NAME = "standalone__linear_kernel_hedgehog__prompt"

R0 = 0
R1 = 51200
XR = 102400
WO = 51200
WP = 153600
ZR = WP + 2048
KVT = 157696
LDS_SIZE = 163840

PART = 0
PS = 3584
OBUF = 0x100000
DBG0 = 0x400000
STAMPS = 0x3E00000
WS_SIZE = 0x4000000
OOB = 0x7f000000

S_X, S_W, S_PHI, S_WO, S_OUT, S_DBG, S_WS = 4, 8, 12, 16, 20, 24, 28
sWAVE, sTB, sPJ, sROT, sTB3, sCB = 32, 33, 34, 35, 36, 37
sT0, sT1, sT2, sT3, sT4, sT5 = 38, 39, 40, 41, 42, 43
sXW = 44
sWOFF = 45
sL2E = 46
sCNT = 47
sM = 48
sM2 = 50
sONE = 52
sPB = 54
sKA = 56
sXB = 66
sST = 70
SPIN_MAX = 20000

def srd(s): return f"s[{s}:{s+3}]"

class Gen:
    vLANE = 1
    vXD0, vXD1 = 2, 3
    vWD = 4
    vXA0, vXA1 = 9, 10
    vP0, vP2, vPV, vP2V = 11, 12, 13, 14
    vG, vN = 15, 16
    vPKW, vPKR = 17, 18
    vDW, vRED = 19, 20
    vPST, vH1 = 21, 22
    vFLG = 23
    vSEL = 24
    vKVW = 28
    vOA, vOB, vOC = 29, 30, 31
    vOS1, vOS2 = 32, 33
    vWOA, vOF, vOF2, vEXW, vEXR, vOUT = 34, 35, 36, 37, 38, 39
    vT = 40
    vACC = 48
    vAF = 72
    vB1 = 120
    vPP = 132
    vE = 152
    vPHI = 192
    vH = 132
    aH = 0
    aX = 0
    aF = 160

    def __init__(self, stop=99, profile=False, dump=None, norot=False):
        self.P = Prog()
        self.stop = stop; self.profile = profile; self.dump = dump; self.norot = norot
        self.nstamp = 0; self.dumpinfo = []; self.dump_base = DBG0
        self.stampnames = []

    def stamp(self, name=""):
        if not self.profile: return
        P = self.P
        assert self.nstamp < 16
        P.lg_drain()
        P(f"s_memrealtime s[{sST+2*self.nstamp}:{sST+2*self.nstamp+1}]")
        P("s_waitcnt lgkmcnt(0)")
        self.stampnames.append(name)
        self.nstamp += 1

    def dump_regs(self, regs, name):
        P = self.P
        n = len(regs); stride = n * 256
        base = self.dump_base
        self.dumpinfo.append((name, base, n))
        self.dump_base += 1024 * stride
        assert self.dump_base <= STAMPS, "dump overflow"
        P.c(f"dump {name}")
        P.lg_drain()
        P("s_nop 7"); P("s_nop 7")
        P(f"s_lshl_b32 s{sT0}, s2, 2")
        P(f"s_add_u32 s{sT0}, s{sT0}, s{sWAVE}")
        P(f"s_mul_i32 s{sT0}, s{sT0}, {stride}")
        P(f"s_add_u32 s{sT0}, s{sT0}, {base}")
        P(f"v_lshlrev_b32 v255, 2, v{self.vLANE}")
        for i, r in enumerate(regs):
            if r.startswith("a"):
                P(f"v_accvgpr_read_b32 v254, {r}"); src = "v254"
            else: src = r
            P(f"s_add_u32 s{sT1}, s{sT0}, {i*256}")
            P.vmem(f"buffer_store_dword {src}, v255, {srd(S_WS)}, s{sT1} offen", "dump")
            P("s_nop 1")
        P.vm_drain()

    def build(self):
        self.prologue()
        steps = [self.phaseK, lambda: self.epiFeat("K"), self.phaseV, self.kv, self.phaseQ,
                 lambda: self.epiFeat("Q"), self.hop1, self.ocomp, self.p3]
        for i, s in enumerate(steps):
            if self.stop >= i + 1: s()
        self.finish()
        return self.P

    def xfrag(self, tt, ks):
        b = self.aX + (ks * 2 + tt) * 4
        return f"a[{b}:{b+3}]"

    def prologue(self):
        P = self.P
        P("s_cmp_ge_u32 s2, 256")
        P("s_cbranch_scc1 L_end")
        if self.profile:
            P(f"s_memrealtime s[{sST}:{sST+1}]"); self.nstamp = 1; self.stampnames.append("start")
        P(f"s_load_dwordx8 s[{sKA}:{sKA+7}], s[0:1], 0")
        P(f"s_load_dwordx4 s[{sKA+8}:{sKA+11}], s[0:1], 32")
        P(f"s_load_dwordx2 s[{sKA+12}:{sKA+13}], s[0:1], 48")
        P(f"v_and_b32 v{self.vLANE}, 63, v0")
        P(f"v_lshrrev_b32 v{self.vT}, 6, v0")
        P(f"v_readfirstlane_b32 s{sWAVE}, v{self.vT}")
        P(f"s_and_b32 s{sT0}, s2, 7")
        P(f"s_lshr_b32 s{sT1}, s2, 3")
        P(f"s_lshr_b32 s{sTB}, s{sT0}, 1")
        P(f"s_lshl_b32 s{sTB}, s{sTB}, 2")
        P(f"s_lshr_b32 s{sPJ}, s{sT1}, 3")
        P(f"s_add_u32 s{sTB}, s{sTB}, s{sPJ}")
        P(f"s_and_b32 s{sPJ}, s{sT0}, 1")
        P(f"s_lshl_b32 s{sPJ}, s{sPJ}, 3")
        P(f"s_and_b32 s{sCB}, s{sT1}, 7")
        P(f"s_add_u32 s{sPJ}, s{sPJ}, s{sCB}")
        P(f"s_lshl_b32 s{sTB3}, s{sT0}, 2")
        P(f"s_lshr_b32 s{sT1}, s{sT1}, 3")
        P(f"s_add_u32 s{sTB3}, s{sTB3}, s{sT1}")
        P(f"s_mul_i32 s{sROT}, s{sCB}, 5")
        P(f"s_mul_i32 s{sT1}, s{sT1}, 10")
        P(f"s_add_u32 s{sROT}, s{sROT}, s{sT1}")
        P(f"s_lshr_b32 s{sROT}, s{sROT}, 2")
        P(f"s_cmp_ge_u32 s{sROT}, 10")
        P(f"s_cselect_b32 s{sT1}, 10, 0")
        P(f"s_sub_u32 s{sROT}, s{sROT}, s{sT1}")
        if self.norot: P(f"s_mov_b32 s{sROT}, 0")
        t0, t1, t2 = self.vT, self.vT + 1, self.vT + 2
        P(f"v_lshrrev_b32 v{t0}, 3, v{self.vLANE}")
        P(f"v_and_b32 v{t1}, 7, v{self.vLANE}")
        P(f"v_lshrrev_b32 v{t2}, 1, v{t0}")
        P(f"v_xor_b32 v{self.vXD0}, v{t1}, v{t2}")
        P(f"v_xor_b32 v{self.vXD1}, 4, v{self.vXD0}")
        P(f"v_lshlrev_b32 v{self.vXD0}, 4, v{self.vXD0}")
        P(f"v_lshlrev_b32 v{self.vXD1}, 4, v{self.vXD1}")
        P(f"s_movk_i32 s{sT2}, 1280")
        P(f"v_mad_u32_u24 v{self.vXD0}, v{t0}, s{sT2}, v{self.vXD0}")
        P(f"v_add_u32 v{t0}, 8, v{t0}")
        P(f"v_mad_u32_u24 v{self.vXD1}, v{t0}, s{sT2}, v{self.vXD1}")
        P(f"s_lshl_b32 s{sT0}, s{sTB}, 2")
        P(f"s_add_u32 s{sT0}, s{sT0}, s{sWAVE}")
        P(f"s_mul_i32 s{sT4}, s{sT0}, {32*1280}")
        P(f"s_mul_i32 s{sXW}, s{sWAVE}, 12288")
        P(f"s_add_u32 s{sXW}, s{sXW}, {XR}")
        P(f"s_mul_i32 s{sWOFF}, s{sPJ}, 80")
        P("s_waitcnt lgkmcnt(0)")
        def mk(s, p, size):
            P(f"s_mov_b32 s{s}, s{p}")
            P(f"s_and_b32 s{s+1}, s{p+1}, 0xffff")
            P(f"s_mov_b32 s{s+2}, {size}")
            P(f"s_mov_b32 s{s+3}, 0x20000")
        mk(S_X, sKA + 0, 2048 * 1280)
        mk(S_W, sKA + 2, 640 * 3840)
        mk(S_PHI, sKA + 4, 25600)
        mk(S_WO, sKA + 6, 640 * 1280)
        mk(S_OUT, sKA + 8, 2048 * 1280)
        mk(S_DBG, sKA + 10, 256)
        mk(S_WS, sKA + 12, WS_SIZE)
        P(f"s_mov_b32 s{sXB}, s{sT4}")
        self.issue_x(0)
        a, b_, c_, d_ = self.vT, self.vT + 1, self.vT + 2, self.vT + 3
        P(f"s_movk_i32 s{sT2}, 3840")
        P(f"s_mov_b32 s{sT3}, 52429")
        for e in range(5):
            P(f"v_add_u32 v{a}, {64*e}, v{self.vLANE}")
            P(f"v_mul_u32_u24 v{b_}, s{sT3}, v{a}")
            P(f"v_lshrrev_b32 v{b_}, 18, v{b_}")
            P(f"v_mul_u32_u24 v{c_}, 5, v{b_}")
            P(f"v_sub_u32 v{a}, v{a}, v{c_}")
            P(f"v_and_b32 v{c_}, 0x28, v{b_}")
            P(f"v_and_b32 v{d_}, 1, v{b_}")
            P(f"v_lshl_or_b32 v{c_}, v{d_}, 4, v{c_}")
            P(f"v_bfe_u32 v{d_}, v{b_}, 4, 1")
            P(f"v_lshl_or_b32 v{c_}, v{d_}, 2, v{c_}")
            P(f"v_bfe_u32 v{d_}, v{b_}, 1, 2")
            P(f"v_or_b32 v{c_}, v{c_}, v{d_}")
            P(f"v_lshlrev_b32 v{a}, 4, v{a}")
            P(f"v_mad_u32_u24 v{self.vWD+e}, v{c_}, s{sT2}, v{a}")
        self.issue_w("K", 0)
        self.issue_x(1)
        self.issue_x(2)
        P(f"v_lshlrev_b32 v{a}, 4, v{self.vLANE}")
        P(f"s_mul_i32 s{sT0}, s{sPJ}, 1600")
        P(f"s_lshl_b32 s{sT1}, s{sWAVE}, 10")
        P(f"s_add_u32 s{sT0}, s{sT0}, s{sT1}")
        P(f"s_cmp_ge_u32 s{sWAVE}, 2")
        P(f"s_cselect_b32 s{sT0}, 0x100000, s{sT0}")
        P(f"s_add_u32 m0, s{sT1}, {WP}")
        P(f"v_add_u32 v{a}, s{sT0}, v{a}")
        P.vmem(f"buffer_load_dwordx4 v{a}, {srd(S_PHI)}, 0 offen lds", "phi")
        self.prefill()
        P(f"v_lshrrev_b32 v{self.vG}, 4, v{self.vLANE}")
        P(f"v_and_b32 v{self.vN}, 15, v{self.vLANE}")
        P(f"v_lshrrev_b32 v{a}, 1, v{self.vN}")
        P(f"v_xor_b32 v{a}, v{a}, v{self.vG}")
        P(f"v_lshlrev_b32 v{a}, 4, v{a}")
        P(f"v_lshl_add_u32 v{a}, v{self.vN}, 7, v{a}")
        P(f"v_add_u32 v{self.vXA0}, s{sXW}, v{a}")
        P(f"v_xor_b32 v{a}, 64, v{a}")
        P(f"v_add_u32 v{self.vXA1}, s{sXW}, v{a}")
        P(f"v_bfe_u32 v{a}, v{self.vLANE}, 2, 2")
        P(f"v_and_b32 v{b_}, 1, v{self.vG}")
        P(f"v_lshl_add_u32 v{a}, v{b_}, 2, v{a}")
        P(f"v_lshrrev_b32 v{b_}, 1, v{self.vG}")
        P(f"v_lshl_add_u32 v{a}, v{a}, 1, v{b_}")
        P(f"v_mul_u32_u24 v{a}, 80, v{a}")
        P(f"v_and_b32 v{b_}, 3, v{self.vLANE}")
        P(f"v_and_b32 v{c_}, 1, v{b_}")
        P(f"v_lshrrev_b32 v{d_}, 1, v{b_}")
        P(f"v_mul_u32_u24 v{d_}, 5, v{d_}")
        P(f"v_lshl_add_u32 v{d_}, v{c_}, 1, v{d_}")
        P(f"v_lshl_add_u32 v{self.vP0}, v{d_}, 3, v{a}")
        P(f"v_xor_b32 v{c_}, 1, v{c_}")
        P(f"v_lshl_add_u32 v{self.vP2}, v{c_}, 5, v{self.vP0}")
        P(f"v_lshl_add_u32 v{self.vPV}, v{b_}, 3, v{a}")
        P(f"v_add_u32 v{self.vPV}, {R1}, v{self.vPV}")
        P(f"v_add_u32 v{self.vP2V}, {R1}, v{self.vP2}")
        P(f"s_mov_b32 s{sL2E}, 0x3fb8aa3b")
        self.stamp("prologue")

    def issue_x(self, lb):
        P = self.P
        P(f"s_add_u32 s{sPB}, s{sROT}, {lb}")
        P(f"s_cmp_ge_u32 s{sPB}, 10")
        P(f"s_cselect_b32 s{sT5}, 10, 0")
        P(f"s_sub_u32 s{sPB}, s{sPB}, s{sT5}")
        P(f"s_lshl_b32 s{sPB}, s{sPB}, 7")
        P(f"s_add_u32 s{sPB}, s{sPB}, s{sXB}")
        P(f"s_add_u32 s{sPB+1}, s{sPB}, 20480")
        slot = (lb % 3) * 4096
        for tt in range(2):
            for q in range(2):
                P(f"s_add_u32 m0, s{sXW}, {slot + tt*2048 + q*1024}")
                vx = self.vXD0 if q == 0 else self.vXD1
                P.vmem(f"buffer_load_dwordx4 v{vx}, {srd(S_X)}, s{sPB+tt} offen lds", f"x{lb}")

    def issue_w(self, part, grp):
        P = self.P
        base = {"K": R0, "V": R1, "Q": R0}[part]
        poff = {"Q": 0, "K": 1280, "V": 2560}[part]
        lab = f"L_skipw_{part}{grp}"
        opt = (grp == 2)
        P(f"s_add_u32 s{sT0}, s{sWAVE}, {4*grp}")
        if opt:
            P(f"s_cmp_ge_u32 s{sT0}, 10")
            P(f"s_cbranch_scc1 {lab}")
        P(f"s_add_u32 s{sPB}, s{sT0}, s{sROT}")
        P(f"s_cmp_ge_u32 s{sPB}, 10")
        P(f"s_cselect_b32 s{sT5}, 10, 0")
        P(f"s_sub_u32 s{sPB}, s{sPB}, s{sT5}")
        P(f"s_mul_i32 s{sPB}, s{sPB}, {64*3840}")
        P(f"s_add_u32 s{sPB}, s{sPB}, s{sWOFF}")
        if poff: P(f"s_add_u32 s{sPB}, s{sPB}, {poff}")
        P(f"s_mul_i32 s{sT0}, s{sT0}, 5120")
        for e in range(5):
            P(f"s_add_u32 m0, s{sT0}, {base + e*1024}")
            P.vmem(f"buffer_load_dwordx4 v{self.vWD+e}, {srd(S_W)}, s{sPB} offen lds", f"W{part}{grp}", optional=opt)
        if opt: P(f"{lab}:")

    def prefill(self):
        P = self.P
        a, b_, c_ = self.vT, self.vT + 1, self.vT + 2
        s0 = self.vT + 4
        for i in range(4): P(f"v_mov_b32 v{s0+i}, -1")
        P(f"s_lshl_b32 s{sT0}, s{sPJ}, 4")
        P(f"s_add_u32 s{sT0}, s{sT0}, s{sTB}")
        P(f"s_mul_i32 s{sT0}, s{sT0}, {PS}")
        if PART: P(f"s_add_u32 s{sT0}, s{sT0}, {PART}")
        P(f"v_lshlrev_b32 v{a}, 4, v0")
        P(f"v_add_u32 v{self.vPST}, s{sT0}, v{a}")
        P(f"v_mov_b32 v{b_}, {OOB}")
        P(f"v_cmp_gt_u32 vcc, 224, v0")
        P(f"v_cndmask_b32 v{self.vPST}, v{b_}, v{self.vPST}, vcc")
        P.vmem(f"buffer_store_dwordx4 v[{s0}:{s0+3}], v{self.vPST}, {srd(S_WS)}, 0 offen sc1", "pf")
        P(f"s_lshl_b32 s{sT0}, s{sTB}, 3")
        P(f"s_mul_i32 s{sT0}, s{sT0}, 20480")
        P(f"s_mul_i32 s{sT1}, s{sPJ}, 1280")
        P(f"s_add_u32 s{sT0}, s{sT0}, s{sT1}")
        P(f"s_add_u32 s{sT0}, s{sT0}, {OBUF}")
        P(f"s_mov_b32 s{sT1}, 52429")
        P(f"s_movk_i32 s{sT2}, 0x5000")
        for j in range(3):
            P(f"v_add_u32 v{a}, {256*j}, v0")
            P(f"v_lshrrev_b32 v{b_}, 4, v{a}")
            P(f"v_mul_u32_u24 v{b_}, s{sT1}, v{b_}")
            P(f"v_lshrrev_b32 v{b_}, 18, v{b_}")
            P(f"v_mul_u32_u24 v{c_}, 80, v{b_}")
            P(f"v_sub_u32 v{c_}, v{a}, v{c_}")
            P(f"v_lshlrev_b32 v{c_}, 4, v{c_}")
            P(f"v_mad_u32_u24 v{b_}, v{b_}, s{sT2}, v{c_}")
            if j == 2:
                P(f"v_mov_b32 v{c_}, {OOB}")
                P(f"v_cmp_gt_u32 vcc, 640, v{a}")
                P(f"v_cndmask_b32 v{b_}, v{c_}, v{b_}, vcc")
            P.vmem(f"buffer_store_dwordx4 v[{s0}:{s0+3}], v{b_}, {srd(S_WS)}, s{sT0} offen sc1", "pf")

    def rd_frags(self, part, ks, buf, tag):
        P = self.P
        r = self.vAF + buf * 12
        for t in range(3):
            if part == "V":
                va = self.vPV if t < 2 else self.vP2V
                off = ks * 2560 + (40 * t if t < 2 else 0)
            else:
                va = self.vP0 if t < 2 else self.vP2
                off = R0 + ks * 2560 + (8 * t if t < 2 else 0)
            P.lds(f"ds_read_b64_tr_b16 v[{r+4*t}:{r+4*t+1}], v{va} offset:{off}", tag)
            P.lds(f"ds_read_b64_tr_b16 v[{r+4*t+2}:{r+4*t+3}], v{va} offset:{off+1280}", tag)
    def acc(self, tt, t):
        b = self.vACC + (tt * 3 + t) * 4
        return f"v[{b}:{b+3}]"
    def mfma_step(self, ks, buf, first, orient):
        P = self.P
        r = self.vAF + buf * 12
        for t in range(3):
            for tt in range(2):
                w = f"v[{r+4*t}:{r+4*t+3}]"
                x = self.xfrag(tt, ks)
                c = "0" if first else self.acc(tt, t)
                if orient == "T": P(f"v_mfma_f32_16x16x32_bf16 {self.acc(tt,t)}, {w}, {x}, {c}")
                else:             P(f"v_mfma_f32_16x16x32_bf16 {self.acc(tt,t)}, {x}, {w}, {c}")

    def phaseK(self):
        P = self.P
        P.c("---- phase K ----")
        for lb in range(10):
            grp = lb // 4
            tags = [f"x{lb}", f"WK{grp}"]
            if lb == 2: tags += ["phi", "pf"]
            P.vm_wait(*tags)
            P.barrier()
            slot = (lb % 3) * 4096
            for ksl in range(2):
                ks = 2 * lb + ksl
                va = self.vXA0 if ksl == 0 else self.vXA1
                for tt in range(2):
                    P.lds(f"ds_read_b128 {self.xfrag(tt,ks)}, v{va} offset:{slot + tt*2048}", f"xr{lb}")
            self.rd_frags("K", 2 * lb, 0, f"af{lb}a")
            self.rd_frags("K", 2 * lb + 1, 1, f"af{lb}b")
            P.lg_wait(f"xr{lb}")
            if lb + 3 < 10: self.issue_x(lb + 3)
            if lb == 0: self.issue_w("K", 1)
            if lb == 3: self.issue_w("K", 2)
            if lb == 6: self.issue_w("V", 0)
            if lb == 7: self.issue_w("V", 1)
            if lb == 8: self.issue_w("V", 2)
            P.lg_wait(f"af{lb}a")
            self.mfma_step(2 * lb, 0, lb == 0, "T")
            P.lg_wait(f"af{lb}b")
            self.mfma_step(2 * lb + 1, 1, False, "T")
            if lb == 2:
                self.publish_flag()
                self.fmap_consts()
            if lb == 4: self.setup2()
            if lb == 5: self.setup3()
        self.stamp("Kgemm")
        if self.dump == "K":
            self.dump_regs([f"v{self.vACC+i}" for i in range(24)], "accK")
            self.dump_regs([f"a{self.aF+i}" for i in range(60)], "fc")

    def publish_flag(self):
        P = self.P
        a, b_ = self.vT, self.vT + 1
        lab = "L_noflag"
        P(f"s_cmp_lg_u32 s{sWAVE}, 0")
        P(f"s_cbranch_scc1 {lab}")
        P(f"s_lshl_b32 s{sT0}, s{sPJ}, 4")
        P(f"s_add_u32 s{sT0}, s{sT0}, s{sTB}")
        P(f"v_mov_b32 v{a}, s{sT0}")
        P(f"v_mov_b32 v{b_}, 1")
        P(f"s_mov_b64 exec, 1")
        P.vmem(f"buffer_store_byte v{b_}, v{a}, {srd(S_DBG)}, 0 offen sc1", "flag", optional=True)
        P(f"s_mov_b64 exec, -1")
        P(f"{lab}:")

    def fmap_consts(self):
        P = self.P
        a, b_, c_, d_ = self.vT, self.vT + 1, self.vT + 2, self.vT + 3
        A0, A1, X0, X1 = self.vT + 4, self.vT + 5, self.vT + 6, self.vT + 7
        P(f"v_bfe_u32 v{a}, v{self.vLANE}, 2, 2")
        P(f"v_and_b32 v{b_}, 3, v{self.vLANE}")
        P(f"v_lshrrev_b32 v{c_}, 1, v{self.vG}")
        P(f"v_mul_u32_u24 v{d_}, 800, v{c_}")
        P(f"v_mul_u32_u24 v{a}, 40, v{a}")
        P(f"v_add_u32 v{d_}, v{d_}, v{a}")
        P(f"v_add_u32 v{d_}, {WP}, v{d_}")
        P(f"v_and_b32 v{a}, 1, v{self.vG}")
        P(f"v_mul_u32_u24 v{A0}, 320, v{a}")
        P(f"v_add_u32 v{A0}, v{A0}, v{d_}")
        P(f"v_add_u32 v{X0}, 640, v{d_}")
        P(f"v_mov_b32 v{A1}, {ZR}")
        P(f"v_lshrrev_b32 v{d_}, 1, v{b_}")
        P(f"v_cmp_eq_u32 s[{sM}:{sM+1}], v{d_}, v{c_}")
        P(f"v_and_b32 v{d_}, 1, v{b_}")
        P(f"v_cmp_eq_u32 s[{sM2}:{sM2+1}], 0, v{d_}")
        P(f"v_cmp_eq_u32 vcc, 0, v{a}")
        P(f"s_and_b64 s[{sT0}:{sT0+1}], s[{sM}:{sM+1}], s[{sM2}:{sM2+1}]")
        P(f"s_andn2_b64 s[{sT2}:{sT2+1}], s[{sM}:{sM+1}], s[{sM2}:{sM2+1}]")
        P(f"s_and_b64 s[{sM}:{sM+1}], s[{sT0}:{sT0+1}], vcc")
        P(f"s_and_b64 s[{sM2}:{sM2+1}], s[{sT2}:{sT2+1}], vcc")
        P("s_nop 1")
        P(f"v_cndmask_b32 v{a}, v{A1}, v{A0}, s[{sT2}:{sT2+1}]")
        P(f"v_cndmask_b32 v{A0}, v{A1}, v{A0}, s[{sT0}:{sT0+1}]")
        P(f"v_cndmask_b32 v{X1}, v{A1}, v{X0}, s[{sM2}:{sM2+1}]")
        P(f"v_cndmask_b32 v{X0}, v{A1}, v{X0}, s[{sM}:{sM+1}]")
        P(f"v_mov_b32 v{A1}, v{a}")
        for t in range(5):
            f = self.aF + t * 12
            P.lds(f"ds_read_b64_tr_b16 a[{f}:{f+1}], v{A0} offset:{8*t}", "fc")
            P.lds(f"ds_read_b64_tr_b16 a[{f+2}:{f+3}], v{A0} offset:{8*t+160}", "fc")
            P.lds(f"ds_read_b64_tr_b16 a[{f+4}:{f+5}], v{A1} offset:{8*t}", "fc")
            P.lds(f"ds_read_b64_tr_b16 a[{f+6}:{f+7}], v{A1} offset:{8*t+160}", "fc")
            P.lds(f"ds_read_b64_tr_b16 a[{f+8}:{f+9}], v{X0} offset:{8*t}", "fc")
            P.lds(f"ds_read_b64_tr_b16 a[{f+10}:{f+11}], v{X1} offset:{8*t}", "fc")
        P.lg_drain()

    def setup2(self):
        P = self.P
        a, b_, c_, d_, e_, f_ = [self.vT + i for i in range(6)]
        P(f"v_and_b32 v{a}, 1, v{self.vG}")
        P(f"v_lshl_add_u32 v{a}, v{a}, 4, v{self.vN}")
        P(f"v_mul_u32_u24 v{a}, 160, v{a}")
        P(f"v_lshrrev_b32 v{b_}, 1, v{self.vG}")
        P(f"v_mul_u32_u24 v{b_}, 80, v{b_}")
        P(f"v_add3_u32 v{self.vPKW}, v{a}, v{b_}, s{sXW}")
        P(f"v_bfe_u32 v{a}, v{self.vLANE}, 2, 2")
        P(f"v_lshl_add_u32 v{a}, v{self.vG}, 2, v{a}")
        P(f"v_mul_u32_u24 v{a}, 160, v{a}")
        P(f"v_and_b32 v{b_}, 3, v{self.vLANE}")
        P(f"v_lshl_add_u32 v{a}, v{b_}, 3, v{a}")
        P(f"v_add_u32 v{self.vPKR}, s{sXW}, v{a}")
        P(f"v_lshlrev_b32 v{a}, 4, v{self.vLANE}")
        P(f"v_add_u32 v{self.vDW}, s{sXW}, v{a}")
        P(f"s_mov_b32 s{sT1}, 52429")
        P(f"v_mul_u32_u24 v{a}, s{sT1}, v0")
        P(f"v_lshrrev_b32 v{a}, 18, v{a}")
        P(f"v_mul_u32_u24 v{b_}, 5, v{a}")
        P(f"v_sub_u32 v{b_}, v0, v{b_}")
        P(f"v_cmp_le_u32 vcc, 21, v{a}")
        P(f"v_cndmask_b32 v{c_}, 0, 1, vcc")
        P(f"v_mul_u32_u24 v{d_}, 21, v{c_}")
        P(f"v_sub_u32 v{d_}, v{a}, v{d_}")
        P(f"v_lshlrev_b32 v{e_}, 3, v{c_}")
        P(f"v_add_u32 v{e_}, v{e_}, v{d_}")
        P(f"v_subrev_u32 v{e_}, 16, v{e_}")
        P(f"v_cmp_le_u32 vcc, 20, v{d_}")
        P(f"v_cndmask_b32 v{e_}, v{e_}, 4, vcc")
        P(f"v_cmp_gt_u32 vcc, 16, v{d_}")
        P(f"v_cndmask_b32 v{e_}, v{e_}, v{d_}, vcc")
        P(f"v_cndmask_b32 v{f_}, 1, 0, vcc")
        P(f"v_mul_u32_u24 v{c_}, 6, v{c_}")
        P(f"v_and_b32 v{d_}, 6, v{b_}")
        P(f"v_add3_u32 v{c_}, v{c_}, v{d_}, v{f_}")
        P(f"v_lshlrev_b32 v{c_}, 10, v{c_}")
        P(f"v_and_b32 v{b_}, 1, v{b_}")
        P(f"v_lshlrev_b32 v{b_}, 9, v{b_}")
        P(f"v_lshlrev_b32 v{e_}, 4, v{e_}")
        P(f"v_add3_u32 v{self.vRED}, v{c_}, v{b_}, v{e_}")
        P(f"v_add_u32 v{self.vRED}, {XR}, v{self.vRED}")
        P(f"s_mul_i32 s{sT0}, s{sPJ}, {16*PS}")
        P(f"s_lshl_b32 s{sT1}, s{sWAVE}, 8")
        P(f"s_add_u32 s{sT0}, s{sT0}, s{sT1}")
        if PART: P(f"s_add_u32 s{sT0}, s{sT0}, {PART}")
        P(f"v_mul_u32_u24 v{a}, {PS}, v{self.vG}")
        P(f"v_lshl_add_u32 v{a}, v{self.vN}, 4, v{a}")
        P(f"v_add_u32 v{self.vH1}, s{sT0}, v{a}")
        P(f"v_and_b32 v{a}, 1, v{self.vN}")
        P(f"v_mov_b32 v{b_}, 0x3f80")
        P(f"v_lshlrev_b32 v{a}, 4, v{a}")
        P(f"v_lshlrev_b32 v{b_}, v{a}, v{b_}")
        P(f"v_lshrrev_b32 v{a}, 1, v{self.vN}")
        for k in range(4):
            P(f"v_cmp_eq_u32 vcc, {k}, v{a}")
            P(f"v_cndmask_b32 v{self.vSEL+k}, 0, v{b_}, vcc")
        P(f"v_lshlrev_b32 v{a}, 4, v{self.vN}")
        P(f"v_lshl_add_u32 v{a}, v{self.vG}, 3, v{a}")
        P(f"s_add_u32 s{sT1}, s{sT1}, {KVT}")
        P(f"v_add_u32 v{self.vKVW}, s{sT1}, v{a}")
        P(f"v_lshrrev_b32 v{a}, 2, v{self.vN}")
        P(f"v_cmp_eq_u32 s[{sONE}:{sONE+1}], 1, v{a}")

    def setup3(self):
        P = self.P
        a, b_, c_, d_, e_ = [self.vT + i for i in range(5)]
        P(f"v_lshrrev_b32 v{a}, 1, v{self.vG}")
        P(f"v_mul_u32_u24 v{b_}, 1680, v{a}")
        P(f"v_and_b32 v{c_}, 3, v{self.vN}")
        P(f"v_mul_u32_u24 v{c_}, 80, v{c_}")
        P(f"v_add_u32 v{b_}, v{b_}, v{c_}")
        P(f"v_add_u32 v{b_}, {KVT}, v{b_}")
        P(f"v_mul_u32_u24 v{c_}, 320, v{a}")
        P(f"v_add_u32 v{self.vOA}, v{b_}, v{c_}")
        P(f"v_xor_b32 v{c_}, 1, v{a}")
        P(f"v_mul_u32_u24 v{c_}, 1280, v{c_}")
        P(f"v_add_u32 v{self.vOB}, v{b_}, v{c_}")
        P(f"v_add_u32 v{self.vOC}, 1600, v{b_}")
        P(f"v_lshrrev_b32 v{c_}, 2, v{self.vN}")
        P(f"v_cmp_eq_u32 vcc, v{c_}, v{self.vG}")
        P(f"v_mov_b32 v{d_}, {ZR}")
        P(f"v_cndmask_b32 v{self.vOA}, v{d_}, v{self.vOA}, vcc")
        P(f"v_cndmask_b32 v{self.vOB}, v{d_}, v{self.vOB}, vcc")
        P(f"v_cndmask_b32 v{self.vOC}, v{d_}, v{self.vOC}, vcc")
        P(f"s_lshl_b32 s{sT0}, s{sTB}, 3")
        P(f"s_lshl_b32 s{sT1}, s{sWAVE}, 1")
        P(f"s_add_u32 s{sT0}, s{sT0}, s{sT1}")
        P(f"s_mul_i32 s{sT0}, s{sT0}, 20480")
        P(f"s_mul_i32 s{sT1}, s{sPJ}, 1280")
        P(f"s_add_u32 s{sT0}, s{sT0}, s{sT1}")
        P(f"s_add_u32 s{sT0}, s{sT0}, {OBUF}")
        P(f"v_and_b32 v{b_}, 1, v{self.vG}")
        P(f"s_movk_i32 s{sT2}, 0x5000")
        P(f"v_mul_u32_u24 v{b_}, s{sT2}, v{b_}")
        P(f"v_lshl_add_u32 v{b_}, v{self.vN}, 4, v{b_}")
        P(f"v_add_u32 v{b_}, s{sT0}, v{b_}")
        P(f"v_mul_u32_u24 v{c_}, 768, v{a}")
        P(f"v_add_u32 v{self.vOS1}, v{b_}, v{c_}")
        P(f"v_lshl_add_u32 v{self.vOS2}, v{a}, 3, v{b_}")
        P(f"v_add_u32 v{self.vOS2}, 512, v{self.vOS2}")
        P(f"s_and_b32 s{sT3}, s{sWAVE}, 1")
        P(f"v_bfe_u32 v{a}, v{self.vLANE}, 2, 2")
        P(f"v_lshl_add_u32 v{a}, v{self.vG}, 2, v{a}")
        P(f"v_mul_u32_u24 v{a}, 160, v{a}")
        P(f"v_and_b32 v{b_}, 3, v{self.vLANE}")
        P(f"v_mul_u32_u24 v{b_}, 40, v{b_}")
        P(f"s_mul_i32 s{sT0}, s{sT3}, 51200")
        P(f"s_add_u32 s{sT0}, s{sT0}, {WO}")
        P(f"v_add3_u32 v{self.vWOA}, v{a}, v{b_}, s{sT0}")
        P(f"s_lshl_b32 s{sT0}, s{sTB3}, 2")
        P(f"s_add_u32 s{sT1}, s{sT0}, s{sWAVE}")
        P(f"s_xor_b32 s{sT2}, s{sWAVE}, 1")
        P(f"s_add_u32 s{sT2}, s{sT0}, s{sT2}")
        P(f"s_mul_i32 s{sT4}, s{sT3}, 10240")
        P(f"s_add_u32 s{sT4}, s{sT4}, {OBUF}")
        P(f"s_mul_i32 s{sT0}, s{sT1}, 20480")
        P(f"s_add_u32 s{sT0}, s{sT0}, s{sT4}")
        P(f"v_lshlrev_b32 v{a}, 4, v{self.vLANE}")
        P(f"v_add_u32 v{self.vOF}, s{sT0}, v{a}")
        P(f"s_mul_i32 s{sT0}, s{sT2}, 20480")
        P(f"s_add_u32 s{sT0}, s{sT0}, s{sT4}")
        P(f"v_add_u32 v{self.vOF2}, s{sT0}, v{a}")
        P(f"s_mul_i32 s{sT0}, s{sWAVE}, 5120")
        P(f"v_add_u32 v{self.vEXW}, s{sT0}, v{a}")
        P(f"s_xor_b32 s{sT0}, s{sWAVE}, 1")
        P(f"s_mul_i32 s{sT0}, s{sT0}, 5120")
        P(f"v_add_u32 v{self.vEXR}, s{sT0}, v{a}")
        P(f"s_lshl_b32 s{sT1}, s{sT1}, 4")
        P(f"v_add_u32 v{a}, s{sT1}, v{self.vN}")
        P(f"s_movk_i32 s{sT2}, 1280")
        P(f"v_mul_u32_u24 v{a}, s{sT2}, v{a}")
        P(f"v_mul_u32_u24 v{b_}, 40, v{self.vG}")
        P(f"s_mul_i32 s{sT0}, s{sCB}, 160")
        P(f"v_add3_u32 v{self.vOUT}, v{a}, v{b_}, s{sT0}")

    def epiFeat(self, which):
        P = self.P
        P.c(f"---- feature epilogue {which} ----")
        B = self.vB1
        def A(tt, t, r): return self.vACC + (tt * 3 + t) * 4 + r
        for tt in range(2):
            for t in range(2):
                P(f"v_cvt_pk_bf16_f32 v{B+4*tt+2*t}, v{A(tt,t,0)}, v{A(tt,t,1)}")
                P(f"v_cvt_pk_bf16_f32 v{B+4*tt+2*t+1}, v{A(tt,t,2)}, v{A(tt,t,3)}")
        for tt in range(2):
            P(f"v_cvt_pk_bf16_f32 v{B+8+2*tt}, v{A(tt,2,0)}, v{A(tt,2,1)}")
            P(f"v_cvt_pk_bf16_f32 v{B+8+2*tt+1}, v{A(tt,2,2)}, v{A(tt,2,3)}")
        PP = self.vPP
        for j in range(3):
            for t in range(5):
                f = self.aF + t * 12 + 4 * j
                c = "0" if j == 0 else f"v[{PP+4*t}:{PP+4*t+3}]"
                P(f"v_mfma_f32_16x16x32_bf16 v[{PP+4*t}:{PP+4*t+3}], a[{f}:{f+3}], v[{B+4*j}:{B+4*j+3}], {c}")
        if self.dump == "P" + which:
            self.dump_regs([f"v{PP+i}" for i in range(20)], "P" + which)
        mx, mn, sp, sn = self.vT, self.vT + 1, self.vT + 2, self.vT + 3
        P(f"v_max3_f32 v{mx}, v{PP}, v{PP+1}, v{PP+2}")
        P(f"v_min3_f32 v{mn}, v{PP}, v{PP+1}, v{PP+2}")
        for i in range(3, 19, 2):
            P(f"v_max3_f32 v{mx}, v{mx}, v{PP+i}, v{PP+i+1}")
            P(f"v_min3_f32 v{mn}, v{mn}, v{PP+i}, v{PP+i+1}")
        P(f"v_max_f32 v{mx}, v{mx}, v{PP+19}")
        P(f"v_min_f32 v{mn}, v{mn}, v{PP+19}")
        P(f"v_mul_f32 v{mx}, s{sL2E}, v{mx}")
        P(f"v_mul_f32 v{mn}, s{sL2E}, v{mn}")
        E = self.vE
        for i in range(20):
            P(f"v_fma_f32 v{E+i}, v{PP+i}, s{sL2E}, -v{mx}")
            P(f"v_fma_f32 v{E+20+i}, -v{PP+i}, s{sL2E}, v{mn}")
        for i in range(40):
            P(f"v_exp_f32 v{E+i}, v{E+i}")
        P(f"v_add_f32 v{sp}, v{E}, v{E+1}")
        P(f"v_add_f32 v{sn}, v{E+20}, v{E+21}")
        for i in range(2, 20):
            P(f"v_add_f32 v{sp}, v{sp}, v{E+i}")
            P(f"v_add_f32 v{sn}, v{sn}, v{E+20+i}")
        P(f"v_rcp_f32 v{sp}, v{sp}")
        P(f"v_rcp_f32 v{sn}, v{sn}")
        for i in range(20):
            P(f"v_mul_f32 v{E+i}, v{E+i}, v{sp}")
            P(f"v_mul_f32 v{E+20+i}, v{E+20+i}, v{sn}")
        for i in range(20):
            P(f"v_cvt_pk_bf16_f32 v{self.vPHI+i}, v{E+2*i}, v{E+2*i+1}")
        if which == "K":
            for i in range(5):
                P.lds(f"ds_write_b128 v{self.vPKW}, v[{self.vPHI+4*i}:{self.vPHI+4*i+3}] offset:{16*i}", "pkw")
        self.stamp("epi" + which)
        if self.dump == "PHI" + which:
            self.dump_regs([f"v{self.vPHI+i}" for i in range(20)], "PHI" + which)

    def gemm_resident(self, part, pre_group=None):
        P = self.P
        orient = "N" if part == "V" else "T"
        def ready(ks):
            if ks in (0, 8, 16):
                P.vm_wait(f"W{part}{ks//8}")
                P.barrier()
                if pre_group: pre_group(ks // 8)
        ready(0)
        self.rd_frags(part, 0, 0, f"{part}f0")
        for ks in range(20):
            if ks + 1 < 20:
                ready(ks + 1)
                self.rd_frags(part, ks + 1, (ks + 1) & 1, f"{part}f{ks+1}")
            P.lg_wait(f"{part}f{ks}")
            self.mfma_step(ks, ks & 1, ks == 0, orient)

    def phaseV(self):
        P = self.P
        P.c("---- phase V ----")
        def pre(g):
            if g == 0:
                for q in range(3): self.issue_w("Q", q)
        self.gemm_resident("V", pre)
        self.stamp("Vgemm")
        if self.dump == "V":
            self.dump_regs([f"v{self.vACC+i}" for i in range(24)], "accV")

    def kv(self):
        P = self.P
        P.c("---- kv partial ----")
        B = self.vB1
        def A(tt, t, r): return self.vACC + (tt * 3 + t) * 4 + r
        AF = self.vAF
        for h in range(2):
            for mt in range(3):
                r = AF + (h * 3 + mt) * 4
                off = h * 80 + mt * 32
                P.lds(f"ds_read_b64_tr_b16 v[{r}:{r+1}], v{self.vPKR} offset:{off}", "pka")
                P.lds(f"ds_read_b64_tr_b16 v[{r+2}:{r+3}], v{self.vPKR} offset:{off+2560}", "pka")
        for t in range(3):
            for tt in range(2):
                P(f"v_cvt_pk_bf16_f32 v{B+4*t+2*tt}, v{A(tt,t,0)}, v{A(tt,t,1)}")
                P(f"v_cvt_pk_bf16_f32 v{B+4*t+2*tt+1}, v{A(tt,t,2)}, v{A(tt,t,3)}")
        P(f"v_mov_b32 v{self.vT}, 0x3f803f80")
        for i in range(4):
            P(f"v_cndmask_b32 v{B+8+i}, v{B+8+i}, v{self.vT}, s[{sONE}:{sONE+1}]")
        P.lg_wait("pka")
        D = self.vE
        for h in range(2):
            for mt in range(3):
                r = AF + (h * 3 + mt) * 4
                for ab in range(2):
                    tau = h * 6 + mt * 2 + ab
                    bb = B + (4 * h if ab == 0 else 8)
                    P(f"v_mfma_f32_16x16x32_bf16 v[{D+4*tau}:{D+4*tau+3}], v[{r}:{r+3}], v[{bb}:{bb+3}], 0")
        for tau in range(12):
            P.lds(f"ds_write_b128 v{self.vDW}, v[{D+4*tau}:{D+4*tau+3}] offset:{tau*1024}", "dw")
        P.lg_drain()
        P.barrier()
        R = AF
        for wv in range(4):
            P.lds(f"ds_read_b128 v[{R+8*wv}:{R+8*wv+3}], v{self.vRED} offset:{wv*12288}", f"rd{wv}")
            P.lds(f"ds_read_b128 v[{R+8*wv+4}:{R+8*wv+7}], v{self.vRED} offset:{wv*12288+256}", f"rd{wv}")
        P.lg_wait("rd1")
        for i in range(8): P(f"v_add_f32 v{R+i}, v{R+i}, v{R+8+i}")
        P.lg_wait("rd3")
        for i in range(8): P(f"v_add_f32 v{R+16+i}, v{R+16+i}, v{R+24+i}")
        for i in range(8): P(f"v_add_f32 v{R+i}, v{R+i}, v{R+16+i}")
        for i in range(4): P(f"v_cvt_pk_bf16_f32 v{R+8+i}, v{R+2*i}, v{R+2*i+1}")
        P(f"v_cmp_gt_u32 vcc, 210, v0")
        for i in range(4): P(f"v_cndmask_b32 v{R+8+i}, 0, v{R+8+i}, vcc")
        P.vmem(f"buffer_store_dwordx4 v[{R+8}:{R+11}], v{self.vPST}, {srd(S_WS)}, 0 offen sc1", "pst")
        self.stamp("kvpub")
        if self.dump == "KV":
            P.vm_drain()

    def wo_offsets(self):
        P = self.P
        a, b_, c_, d_ = [self.vT + i for i in range(4)]
        P(f"s_movk_i32 s{sT2}, 1280")
        P(f"s_mov_b32 s{sT3}, 52429")
        for e in range(5):
            P(f"v_add_u32 v{a}, {64*e}, v{self.vLANE}")
            P(f"v_lshrrev_b32 v{b_}, 1, v{a}")
            P(f"v_mul_u32_u24 v{b_}, s{sT3}, v{b_}")
            P(f"v_lshrrev_b32 v{b_}, 18, v{b_}")
            P(f"v_mul_u32_u24 v{c_}, 10, v{b_}")
            P(f"v_sub_u32 v{a}, v{a}, v{c_}")
            P(f"v_and_b32 v{c_}, 12, v{b_}")
            P(f"v_lshlrev_b32 v{c_}, 1, v{c_}")
            P(f"v_lshrrev_b32 v{d_}, 4, v{b_}")
            P(f"v_lshl_or_b32 v{c_}, v{d_}, 2, v{c_}")
            P(f"v_and_b32 v{d_}, 3, v{b_}")
            P(f"v_or_b32 v{c_}, v{c_}, v{d_}")
            P(f"v_lshlrev_b32 v{a}, 4, v{a}")
            P(f"v_mad_u32_u24 v{self.vWD+e}, v{c_}, s{sT2}, v{a}")

    def issue_wo(self, js, tag):
        P = self.P
        for j in js:
            P(f"s_add_u32 s{sT0}, s{sWAVE}, {4*j}")
            P(f"s_mul_i32 s{sPB}, s{sT0}, {32*1280}")
            P(f"s_mul_i32 s{sT1}, s{sCB}, 160")
            P(f"s_add_u32 s{sPB}, s{sPB}, s{sT1}")
            P(f"s_mul_i32 s{sT0}, s{sT0}, 5120")
            for e in range(5):
                P(f"s_add_u32 m0, s{sT0}, {WO + e*1024}")
                P.vmem(f"buffer_load_dwordx4 v{self.vWD+e}, {srd(S_WO)}, s{sPB} offen lds", tag)

    def phaseQ(self):
        P = self.P
        P.c("---- phase Q ----")
        self.wo_offsets()
        def pre(g):
            if g == 0: self.issue_wo([0, 1, 2], "woA")
        self.gemm_resident("Q", pre)
        self.stamp("Qgemm")
        if self.dump == "Q":
            self.dump_regs([f"v{self.vACC+i}" for i in range(24)], "accQ")
        if self.stop >= 7:
            self.flags_issue()
            self.hop1_loads("h1")

    def flags_issue(self):
        P = self.P
        a = self.vT + 6
        b_ = self.vT + 7
        P(f"s_lshr_b32 s{sT0}, s{sTB3}, 1")
        P(f"v_lshlrev_b32 v{a}, 4, v{self.vLANE}")
        P(f"v_add_u32 v{a}, s{sT0}, v{a}")
        P(f"s_lshl_b32 s{sT0}, s{sPJ}, 4")
        P(f"s_sub_u32 s{sT0}, s{sT0}, 16")
        P(f"v_add_u32 v{b_}, s{sT0}, v{self.vLANE}")
        P(f"v_cmp_gt_u32 vcc, 16, v{self.vLANE}")
        P(f"v_cndmask_b32 v{a}, v{b_}, v{a}, vcc")
        P(f"v_mov_b32 v{b_}, 0x1000")
        P(f"v_cmp_gt_u32 vcc, 32, v{self.vLANE}")
        P(f"v_cndmask_b32 v{self.vFLG}, v{b_}, v{a}, vcc")

    def hop1_loads(self, tag):
        P = self.P
        H = self.aH
        for pq in range(4): P(f"s_mov_b32 s{sKA+pq}, {pq*4*PS}")
        P.vmem(f"buffer_load_ubyte v{self.vT+5}, v{self.vFLG}, {srd(S_DBG)}, 0 offen sc1", tag)
        for j in range(4):
            opt = (j == 3)
            if opt:
                P(f"s_cmp_ge_u32 s{sWAVE}, 2")
                P(f"s_cbranch_scc1 L_h1skip_{tag}")
            for pq in range(4):
                r = H + (j * 4 + pq) * 4
                P.vmem(f"buffer_load_dwordx4 a[{r}:{r+3}], v{self.vH1}, {srd(S_WS)}, s{sKA+pq} offen offset:{j*1024} sc1", tag, optional=opt)
            if opt: P(f"L_h1skip_{tag}:")

    def hop1(self):
        P = self.P
        P.c("---- hop1: gather + reduce kv partials ----")
        H = self.aH
        D = self.vAF
        P(f"s_mov_b32 s{sCNT}, 0")
        P.vm_drain()
        P("L_h1_check:")
        P("s_nop 4")
        P(f"s_cmp_lt_u32 s{sWAVE}, 2")
        P(f"s_cbranch_scc1 L_h1_nozero")
        for i in range(16): P(f"v_accvgpr_write_b32 a{H+48+i}, 0")
        P("L_h1_nozero:")
        P("s_nop 1")
        for j in range(4):
            for pq in range(4):
                r = H + (j * 4 + pq) * 4
                c = "0" if pq == 0 else f"v[{D+4*j}:{D+4*j+3}]"
                P(f"v_mfma_f32_16x16x32_bf16 v[{D+4*j}:{D+4*j+3}], v[{self.vSEL}:{self.vSEL+3}], a[{r}:{r+3}], {c}")
        P(f"v_cmp_ne_u32 vcc, 1, v{self.vT+5}")
        P(f"s_and_b32 s{sM}, vcc_lo, -1")
        P("s_nop 7")
        t = self.vT
        P(f"v_add_f32 v{t}, v{D}, v{D+1}")
        for i in range(2, 16): P(f"v_add_f32 v{t}, v{t}, v{D+i}")
        P(f"v_cmp_u_f32 vcc, v{t}, v{t}")
        P("s_nop 1")
        P(f"s_or_b32 s{sM}, s{sM}, vcc_lo")
        P(f"s_or_b32 s{sM}, s{sM}, vcc_hi")
        P(f"s_cmp_eq_u32 s{sM}, 0")
        P(f"s_cbranch_scc1 L_h1_ok")
        P(f"s_add_u32 s{sCNT}, s{sCNT}, 1")
        P(f"s_cmp_gt_u32 s{sCNT}, {SPIN_MAX}")
        P(f"s_cbranch_scc1 L_h1_ok")
        self.hop1_loads("h1r")
        P.vm_drain()
        P("s_branch L_h1_check")
        P("L_h1_ok:")
        P("s_nop 7")
        self.issue_wo([3, 4], "woB")
        for j in range(4):
            P(f"v_cvt_pk_bf16_f32 v{t+2*(j&1)}, v{D+4*j}, v{D+4*j+1}")
            P(f"v_cvt_pk_bf16_f32 v{t+2*(j&1)+1}, v{D+4*j+2}, v{D+4*j+3}")
            opt = (j == 3)
            if opt:
                P(f"s_cmp_ge_u32 s{sWAVE}, 2")
                P(f"s_cbranch_scc1 L_h1_skipw")
            P("s_mov_b64 exec, 0xffffffff")
            P.lds(f"ds_write_b64 v{self.vKVW}, v[{t+2*(j&1)}:{t+2*(j&1)+1}] offset:{j*1024}", "kvw")
            P("s_mov_b64 exec, -1")
            if opt: P("L_h1_skipw:")
        P.lg_drain()
        P.barrier()
        self.stamp("hop1")

    def ocomp(self):
        P = self.P
        P.c("---- o = phi_q kv / den ----")
        for t in range(6):
            for i in range(5):
                r = (t * 5 + i) * 4
                if t < 4: va, off = self.vOA, 320 * t + 16 * i
                elif t == 4: va, off = self.vOB, 16 * i
                else: va, off = self.vOC, 16 * i
                P.lds(f"ds_read_b128 a[{r}:{r+3}], v{va} offset:{off}", f"oa{t}")
        D = self.vAF
        order = [5, 0, 1, 2, 3, 4]
        for i in range(5):
            if i == 0:
                P.lg_drain()
            for t in range(6):
                r = (t * 5 + i) * 4
                c = "0" if i == 0 else f"v[{D+4*t}:{D+4*t+3}]"
                P(f"v_mfma_f32_16x16x32_bf16 v[{D+4*t}:{D+4*t+3}], a[{r}:{r+3}], v[{self.vPHI+4*i}:{self.vPHI+4*i+3}], {c}")
        t0 = self.vT
        P("s_nop 7")
        P(f"v_add_f32 v{t0}, 0x358637bd, v{D+20}")
        P(f"v_rcp_f32 v{t0}, v{t0}")
        for i in range(20): P(f"v_mul_f32 v{D+i}, v{D+i}, v{t0}")
        O = self.vB1
        for i in range(10): P(f"v_cvt_pk_bf16_f32 v{O+i}, v{D+2*i}, v{D+2*i+1}")
        for i in range(10): P(f"v_min_u32 v{O+i}, -2, v{O+i}")
        P.vmem(f"buffer_store_dwordx4 v[{O}:{O+3}], v{self.vOS1}, {srd(S_WS)}, 0 offen sc1", "ost")
        P.vmem(f"buffer_store_dwordx4 v[{O+4}:{O+7}], v{self.vOS1}, {srd(S_WS)}, 0 offen offset:256 sc1", "ost")
        P.vmem(f"buffer_store_dwordx2 v[{O+8}:{O+9}], v{self.vOS2}, {srd(S_WS)}, 0 offen sc1", "ost")
        self.stamp("opub")
        if self.dump == "O":
            P.vm_drain()

    def of_loads(self, tag):
        P = self.P
        F = self.vH
        P(f"s_movk_i32 s{sKA}, 4096")
        P(f"s_movk_i32 s{sKA+1}, 8192")
        for tl in range(2):
            va = self.vOF if tl == 0 else self.vOF2
            for s in range(10):
                r = F + (tl * 10 + s) * 4
                so = "0" if s < 4 else f"s{sKA + (s//4 - 1)}"
                P.vmem(f"buffer_load_dwordx4 v[{r}:{r+3}], v{va}, {srd(S_WS)}, {so} offen offset:{(s%4)*1024} sc1", tag)

    def p3(self):
        P = self.P
        P.c("---- P3: out = o @ wo ----")
        F = self.vH
        self.of_loads("of")
        P.vm_wait("woA", "woB")
        P.barrier()
        for s in range(10):
            for ct in range(5):
                r = (s * 5 + ct) * 4
                off = s * 5120 + 8 * ct
                P.lds(f"ds_read_b64_tr_b16 a[{r}:{r+1}], v{self.vWOA} offset:{off}", "wof")
                P.lds(f"ds_read_b64_tr_b16 a[{r+2}:{r+3}], v{self.vWOA} offset:{off+2560}", "wof")
        P(f"s_mov_b32 s{sCNT}, 0")
        P.vm_drain()
        P("L_h2_check:")
        t = self.vT
        P(f"v_max3_u32 v{t}, v{F}, v{F+1}, v{F+2}")
        P(f"v_max3_u32 v{t+1}, v{F+3}, v{F+4}, v{F+5}")
        for i in range(6, 78, 4):
            P(f"v_max3_u32 v{t}, v{t}, v{F+i}, v{F+i+1}")
            P(f"v_max3_u32 v{t+1}, v{t+1}, v{F+i+2}, v{F+i+3}")
        P(f"v_max3_u32 v{t}, v{t}, v{F+78}, v{F+79}")
        P(f"v_max_u32 v{t}, v{t}, v{t+1}")
        P(f"v_cmp_eq_u32 vcc, -1, v{t}")
        P("s_nop 1")
        P(f"s_or_b32 s{sM}, vcc_lo, vcc_hi")
        P(f"s_cmp_eq_u32 s{sM}, 0")
        P(f"s_cbranch_scc1 L_h2_ok")
        P(f"s_add_u32 s{sCNT}, s{sCNT}, 1")
        P(f"s_cmp_gt_u32 s{sCNT}, {SPIN_MAX}")
        P(f"s_cbranch_scc1 L_h2_ok")
        self.of_loads("ofr")
        P.vm_drain()
        P("s_branch L_h2_check")
        P("L_h2_ok:")
        P.lg_drain()
        self.stamp("hop2")
        ACC = self.vACC
        for s in range(10):
            for tl in range(2):
                for ct in range(5):
                    r = (s * 5 + ct) * 4
                    d = ACC + (tl * 5 + ct) * 4
                    f = F + (tl * 10 + s) * 4
                    c = "0" if s == 0 else f"v[{d}:{d+3}]"
                    P(f"v_mfma_f32_16x16x32_bf16 v[{d}:{d+3}], a[{r}:{r+3}], v[{f}:{f+3}], {c}")
        for ct in range(5):
            d = ACC + (5 + ct) * 4
            P.lds(f"ds_write_b128 v{self.vEXW}, v[{d}:{d+3}] offset:{R0 + ct*1024}", "exw")
        P.lg_drain()
        P.barrier()
        X = self.vAF + 16
        for ct in range(5):
            P.lds(f"ds_read_b128 v[{X+4*ct}:{X+4*ct+3}], v{self.vEXR} offset:{R0 + ct*1024}", "exr")
        P.lg_drain()
        for i in range(20): P(f"v_add_f32 v{ACC+i}, v{ACC+i}, v{X+i}")
        O = self.vB1
        for i in range(10): P(f"v_cvt_pk_bf16_f32 v{O+i}, v{ACC+2*i}, v{ACC+2*i+1}")
        P.vmem(f"buffer_store_dwordx4 v[{O}:{O+3}], v{self.vOUT}, {srd(S_OUT)}, 0 offen", "out")
        P.vmem(f"buffer_store_dwordx4 v[{O+4}:{O+7}], v{self.vOUT}, {srd(S_OUT)}, 0 offen offset:16", "out")
        P.vmem(f"buffer_store_dwordx2 v[{O+8}:{O+9}], v{self.vOUT}, {srd(S_OUT)}, 0 offen offset:32", "out")
        self.stamp("out")

    def finish(self):
        P = self.P
        if self.profile:
            P.vm_drain()
            self.stamp("end")
            P(f"s_lshl_b32 s{sT0}, s2, 2")
            P(f"s_add_u32 s{sT0}, s{sT0}, s{sWAVE}")
            P(f"s_lshl_b32 s{sT0}, s{sT0}, 7")
            P(f"s_add_u32 s{sT0}, s{sT0}, {STAMPS}")
            P("v_mov_b32 v2, 0")
            P(f"s_mov_b64 exec, 1")
            for i in range(16):
                if i < self.nstamp:
                    P(f"v_mov_b32 v4, s{sST+2*i}")
                    P(f"v_mov_b32 v5, s{sST+2*i+1}")
                else:
                    P("v_mov_b32 v4, 0"); P("v_mov_b32 v5, 0")
                P(f"buffer_store_dwordx2 v[4:5], v2, {srd(S_WS)}, s{sT0} offen offset:{8*i}")
                P("s_nop 1")
            P("s_waitcnt vmcnt(0)")
        P("L_end:")
        P("s_endpgm")

HEADER = f"""; hedgehog linear attention: fused persistent kernel (K/V/Q projections, feature maps, kv reduction, output projection)
; @launch grid=(256,1,1) block=(256,1,1) lds={LDS_SIZE}
.amdgcn_target "amdgcn-amd-amdhsa--gfx950"
.text
.globl {NAME}_kernel
.p2align 8
.type {NAME}_kernel,@function
{NAME}_kernel:
"""
FOOTER = f"""
.section .rodata,"a"
.p2align 6
.amdhsa_kernel {NAME}_kernel
  .amdhsa_next_free_vgpr 512
  .amdhsa_next_free_sgpr 102
  .amdhsa_accum_offset 256
  .amdhsa_group_segment_fixed_size 0
  .amdhsa_kernarg_size 56
  .amdhsa_user_sgpr_count 2
  .amdhsa_user_sgpr_kernarg_segment_ptr 1
  .amdhsa_system_sgpr_workgroup_id_x 1
  .amdhsa_float_denorm_mode_32 3
  .amdhsa_float_denorm_mode_16_64 3
.end_amdhsa_kernel
"""

if __name__ == "__main__":
    ap = argparse.ArgumentParser()
    ap.add_argument("-o", default="k.s")
    ap.add_argument("--stop", type=int, default=99)
    ap.add_argument("--profile", action="store_true")
    ap.add_argument("--dump", default=None)
    ap.add_argument("--norot", action="store_true")
    a = ap.parse_args()
    g = Gen(stop=a.stop, profile=a.profile, dump=a.dump, norot=a.norot)
    P = g.build()
    body, nn = P.render()
    open(a.o, "w").write(HEADER + body + FOOTER)
    print("nops inserted:", nn, "dump info:", g.dumpinfo, "stamps:", g.stampnames)
```

```python
import re

TRANS = ("v_exp_f32", "v_log_f32", "v_rcp_f32", "v_rsq_f32", "v_sqrt_f32", "v_sin_f32", "v_cos_f32", "v_rcp_iflag_f32")

def regs_of(tok):
    tok = tok.strip()
    m = re.fullmatch(r"(-?)(?:abs\()?([vas])\[(\d+):(\d+)\]\)?", tok)
    if m:
        return [f"{m.group(2)}{i}" for i in range(int(m.group(3)), int(m.group(4)) + 1)]
    m = re.fullmatch(r"(-?)(?:abs\()?([vas])(\d+)\)?", tok)
    if m:
        return [f"{m.group(2)}{m.group(3)}"]
    if tok in ("vcc", "exec", "m0", "scc"):
        return [tok]
    if tok in ("vcc_lo", "vcc_hi"): return ["vcc"]
    if tok in ("exec_lo", "exec_hi"): return ["exec"]
    return []

class Ins:
    __slots__ = ("text", "mn", "kind", "w", "r", "trans", "srcC", "wide_store")
    def __init__(self, text):
        self.text = text
        t = text.split(";")[0].strip()
        self.w = set(); self.r = set(); self.trans = False; self.srcC = set(); self.wide_store = False
        if not t or t.endswith(":") or t.startswith("."):
            self.mn = ""; self.kind = "label" if t.endswith(":") else "dir"; return
        parts = t.split(None, 1)
        mn = parts[0]; self.mn = mn
        ops = []
        if len(parts) > 1:
            ops = [o.strip() for o in re.split(r",(?![^\[]*\])", parts[1])]
            last = ops[-1].split()
            if last:
                ops[-1] = last[0]
                mods = last[1:]
            else:
                mods = []
        else:
            mods = []
        R = [regs_of(o) for o in ops]
        def rd(lst):
            for x in lst: self.r.update(x)
        if mn.startswith("v_mfma"):
            self.kind = "mfma"; self.w.update(R[0]); rd(R[1:]); self.srcC = set(R[3])
        elif mn.startswith("v_"):
            self.kind = "valu"; self.trans = mn in TRANS or mn.replace("_e32", "").replace("_e64", "") in TRANS
            self.w.update(R[0]); rd(R[1:])
            if mn.startswith("v_fmac") or mn.startswith("v_dot2c") or mn.startswith("v_writelane") or "swap" in mn:
                self.r.update(R[0])
            if "swap" in mn: self.w.update(R[1])
            if mn.startswith("v_cndmask") and len(ops) == 3: self.r.add("vcc")
            if mn.startswith("v_cmpx"): self.w.add("exec")
        elif mn.startswith("ds_read") or mn.startswith("ds_bpermute") or mn.startswith("ds_swizzle"):
            self.kind = "dsr"; self.w.update(R[0]); rd(R[1:])
        elif mn.startswith("ds_"):
            self.kind = "dsw"; rd(R)
        elif mn.startswith("buffer_load") or mn.startswith("global_load"):
            if "lds" in mods or "_lds_" in mn:
                self.kind = "dma"; rd(R); self.r.add("m0")
            else:
                self.kind = "vld"; self.w.update(R[0]); rd(R[1:])
        elif mn.startswith("buffer_store") or mn.startswith("global_store") or mn.startswith("buffer_atomic") or mn.startswith("global_atomic"):
            self.kind = "vst"; rd(R)
            self.wide_store = mn.endswith("x4") or mn.endswith("x3")
        elif mn.startswith("s_"):
            self.kind = "salu"
            if mn in ("s_waitcnt", "s_barrier", "s_nop", "s_endpgm", "s_sleep", "s_setprio", "s_branch") or mn.startswith("s_cbranch"):
                if mn == "s_nop": self.kind = "nop"
                if mn.startswith("s_cbranch_vcc"): self.r.add("vcc")
                if mn.startswith("s_cbranch_exec"): self.r.add("exec")
                if mn.startswith("s_cbranch_scc"): self.r.add("scc")
            elif mn.startswith("s_cmp") or mn.startswith("s_bitcmp"):
                rd(R); self.w.add("scc")
            else:
                self.w.update(R[0]); rd(R[1:]); self.w.add("scc")
                if "saveexec" in mn: self.w.add("exec"); self.r.add("exec")
        else:
            raise ValueError("unknown instruction: " + text)
    def states(self):
        if self.kind in ("label", "dir"): return 0
        if self.kind == "nop": return int(self.text.split()[1], 0) + 1
        return 1

def isv(r): return r[0] in "va" and r[1:].isdigit()
def iss(r): return (r[0] == "s" and r[1:].isdigit()) or r == "vcc"

def need(prev, cur):
    n = 0
    pw, pr = prev.w, prev.r
    if prev.kind == "valu":
        vw = {x for x in pw if isv(x)}
        sw = {x for x in pw if iss(x)}
        if cur.kind == "mfma" and vw & cur.r: n = max(n, 2)
        if prev.trans and cur.kind in ("valu",) and not cur.trans and vw & cur.r: n = max(n, 1)
        if prev.trans and cur.kind in ("valu",) and cur.trans and vw & cur.r: n = max(n, 1)
        if cur.kind == "valu" and sw & cur.r:
            n = max(n, 4 if cur.mn.startswith(("v_readlane", "v_writelane")) else 2)
        if cur.kind in ("vld", "vst", "dma") and sw & cur.r: n = max(n, 5)
        if cur.kind == "salu" and sw & cur.r: n = max(n, 2)
        if cur.kind == "valu" and cur.mn.startswith(("v_readfirstlane", "v_readlane")) and vw & cur.r: n = max(n, 1)
        if cur.kind == "valu" and ("permlane" in cur.mn or "dpp" in cur.text or "row_" in cur.text or "quad_perm" in cur.text) and vw & cur.r: n = max(n, 2)
        if "exec" in pw and cur.kind == "mfma": n = max(n, 4)
    if prev.kind == "mfma":
        d = pw
        if cur.kind == "mfma":
            ab = cur.r - cur.srcC
            if d & ab: n = max(n, 8)
            if d & cur.srcC and d != cur.srcC: n = max(n, 6)
            if d & cur.w and d != cur.w: n = max(n, 6)
            if d & cur.w and d == cur.w and not (cur.srcC == d): n = max(n, 6)
        elif cur.kind in ("valu", "dsr", "dsw", "vld", "vst", "dma"):
            if d & (cur.r | cur.w): n = max(n, 8)
        if cur.kind == "valu" and prev.srcC & cur.w: n = max(n, 3)
        if cur.kind in ("dsr", "vld") and prev.srcC & cur.w: n = max(n, 3)
    if prev.kind == "salu" and "m0" in pw and cur.kind == "dma": n = max(n, 1)
    if prev.kind == "vst" and prev.wide_store and cur.kind == "valu":
        if {x for x in pr if isv(x)} & cur.w: n = max(n, 2)
    return n

class Prog:
    def __init__(self):
        self.ins = []
        self.vm = []
        self.lg = []
    def __call__(self, text):
        for line in text.split("\n"):
            line = line.strip()
            if line: self.ins.append(Ins(line))
    def c(self, text):
        i = Ins(""); i.text = "; " + text; self.ins.append(i)
    def vmem(self, text, tag, optional=False):
        self(text); self.vm.append((tag, optional))
    def vm_wait(self, *tags, extra=""):
        last = -1
        for i, (t, o) in enumerate(self.vm):
            if t in tags: last = i
        if last < 0:
            if extra: self("s_waitcnt " + extra)
            return
        n = sum(1 for (t, o) in self.vm[last + 1:] if not o)
        assert n <= 63, n
        self(f"s_waitcnt vmcnt({n})" + (" " + extra if extra else ""))
        self.vm = self.vm[last + 1:]
    def vm_drain(self):
        self("s_waitcnt vmcnt(0)"); self.vm = []
    def vm_out(self): return len(self.vm)
    def lds(self, text, tag=None):
        self(text); self.lg.append(tag)
    def lg_wait(self, *tags):
        last = -1
        for i, t in enumerate(self.lg):
            if t in tags: last = i
        if last < 0: return
        n = len(self.lg) - 1 - last
        if n > 15: n = 15
        self.lg = self.lg[last + 1:]
        self(f"s_waitcnt lgkmcnt({n})")
    def lg_drain(self):
        self("s_waitcnt lgkmcnt(0)"); self.lg = []
    def barrier(self):
        self("s_barrier")
    def peephole(self):
        L = self.ins
        i = 1
        while i < len(L) - 1:
            a, b, c = L[i-1], L[i], L[i+1]
            if b.kind == "salu" and "m0" in b.w and c.kind == "dma" and a.kind in ("valu", "mfma", "dsr", "dsw") \
               and not (a.r & b.w) and not (a.w & b.r) and "scc" not in a.r:
                L[i-1], L[i] = b, a
            i += 1
    def render(self):
        self.peephole()
        out = []
        hist = []
        pos = 0
        nins = 0
        for ins in self.ins:
            if ins.kind in ("label", "dir"):
                out.append(ins.text if ins.kind == "label" or ins.text.startswith((".", ";")) else ins.text); continue
            req = 0
            for (p, ppos) in reversed(hist):
                dist = pos - ppos - 1
                if dist >= 10: break
                k = need(p, ins) - dist
                if k > req: req = k
            if req > 0:
                out.append(f"  s_nop {req-1}"); pos += req; nins += 1
            out.append("  " + ins.text)
            hist.append((ins, pos)); pos += ins.states()
            if len(hist) > 24: hist.pop(0)
        return "\n".join(out), nins
```

```python
from asmlib import Prog, Ins

class S(list):
    def i(self, t):
        for line in t.split("\n"):
            line = line.strip()
            if line: self.append(("i", line))
        return self
    def lds(self, t, tag=None): self.append(("lds", t, tag)); return self
    def vm(self, t, tag, opt=False): self.append(("vm", t, tag, opt)); return self
    def lgw(self, *tags): self.append(("lgw", tags)); return self
    def lg0(self): self.append(("lg0",)); return self
    def vmw(self, *tags): self.append(("vmw", tags)); return self
    def vm0(self): self.append(("vm0",)); return self
    def bar(self): self.append(("bar",)); return self
    def c(self, t): self.append(("c", t)); return self
    def call(self, f): self.append(("call", f)); return self

def emit(P, s):
    for op in s:
        k = op[0]
        if k == "i": P(op[1])
        elif k == "lds": P.lds(op[1], op[2])
        elif k == "vm": P.vmem(op[1], op[2], op[3])
        elif k == "lgw": P.lg_wait(*op[1])
        elif k == "lg0": P.lg_drain()
        elif k == "vmw": P.vm_wait(*op[1])
        elif k == "vm0": P.vm_drain()
        elif k == "bar": P.barrier()
        elif k == "c": P.c(op[1])
        elif k == "call": op[1]()
        else: raise ValueError(k)

def is_mfma(op): return op[0] == "i" and op[1].startswith("v_mfma")

def weave(main, groups, every=1, start=0, pred=is_mfma):
    out = S(); groups = list(groups); n = 0
    for op in main:
        out.append(op)
        if pred(op):
            n += 1
            if n > start and (n - start) % every == 0 and groups:
                out.extend(groups.pop(0))
    return out, groups

def weave_frac(main, groups, pred=lambda op: op[0] in ("i", "lds"), lo=0.0, hi=1.0):
    idx = [i for i, op in enumerate(main) if pred(op)]
    n = len(groups)
    if n == 0: return S(main)
    pos = {}
    for g in range(n):
        f = lo + (hi - lo) * (g + 0.5) / n
        j = idx[min(len(idx) - 1, int(f * len(idx)))]
        pos.setdefault(j, []).append(groups[g])
    out = S()
    for i, op in enumerate(main):
        out.append(op)
        for g in pos.get(i, []): out.extend(g)
    return out
```

```python
import sys, argparse
from asmlib import Prog
from asmlib2 import S, emit, weave, weave_frac, is_mfma

NAME = "standalone__linear_kernel_hedgehog__prompt"

R0 = 0
R1 = 51200
XR = 102400
PHI = 102400
WO = 51200
WP = 153600
ZR = WP + 2048
KVT = 157696
BV = 122880
DUM = 161792
LDS_SIZE = 163840

PART = 0
PS = 3584
OBUF = 0x100000
DBG0 = 0x400000
STAMPS = 0x3E00000
OOB = 0x7f000000

S_X, S_WK, S_WV, S_WQ, S_PHI, S_WO, S_OUT, S_DBG, S_WS = 4, 8, 12, 16, 20, 24, 28, 32, 36
sWAVE, sTB, sPJ, sROT, sTB3, sCB, sGRP = 40, 41, 42, 43, 44, 45, 46
sFAST = 3
sT0, sT1, sT2, sT3, sT4, sT5 = 48, 49, 50, 51, 52, 53
sXW = 54; sL2E = 55; sCNT = 56; sFLAGV = 57
sM = 58; sM2 = 60; sONE = 0
sKA = 84
sXO = 64
sWOFS = 74
sW1280 = 47
sSO = 63
NSTAMP = 9
def stamp_reg(i): return 98 if i == 0 else 84 + 2 * (i - 1)
SPIN_MAX = 20000

def srd(s): return f"s[{s}:{s+3}]"

class Gen:
    vLANE = 1
    vXD = 2
    vWD = 6
    vWOD = 8
    vBVW, vBVR, vSTW, vSTW2, vSTR = 10, 11, 12, 13, 14
    vXA0, vXA1 = 16, 17
    vP0, vP2, vPV, vP2V = 18, 19, 20, 21
    vG, vN = 22, 23
    vPKW, vPKR, vDW, vRED, vPST, vH1, vFLG, vKVW = 24, 25, 26, 27, 28, 29, 30, 31
    vSEL = 32
    vOA, vOB, vOC, vOS1, vOS2, vWOA, vOF, vOF2, vEXW, vEXR, vOUT, vS1, vS2 = 36, 37, 38, 39, 40, 41, 42, 43, 44, 45, 46, 47, 48
    vFL = 49
    vSM = 50
    vBAD = 51
    vT = 56
    vACC = 64
    vAF = 88
    vB1 = 136
    vPP = 148
    vE = 168
    vPHI = 208
    vF = 136
    vO = 228
    aX = 0
    aF = 160
    aH = 0

    def __init__(self, stop=99, profile=False, dump=None, norot=False, ticks=None, ws_size=0x400000, fast=True, opts=None):
        self.P = Prog()
        self.stop = stop; self.profile = profile; self.dump = dump; self.norot = norot; self.ticks = ticks
        self.nstamp = 0; self.dumpinfo = []; self.dump_base = DBG0; self.stampnames = []
        self.ws_size = ws_size; self.fast = fast
        self.opts = opts or {}

    def tick_op(self, name):
        if not self.profile: return []
        if self.ticks is None:
            if not (name.startswith("S_") or name == "start"): return []
        elif not any(name.startswith(t) for t in self.ticks): return []
        if self.nstamp >= NSTAMP - 1: return []
        ins = "s_memtime" if self.ticks is not None else "s_memrealtime"
        r = stamp_reg(self.nstamp)
        ops = [("i", f"{ins} s[{r}:{r+1}]")]
        self.stampnames.append(name); self.nstamp += 1
        return ops
    def tick(self, s, name):
        s.append(("call", lambda n=name: emit(self.P, self.tick_op(n))))
    def stamp(self, s, name):
        self.tick(s, "S_" + name)

    def dump_regs(self, regs, name):
        s = S()
        n = len(regs); stride = n * 256
        base = self.dump_base
        self.dumpinfo.append((name, base, n))
        self.dump_base += 1024 * stride
        assert self.dump_base <= STAMPS, "dump overflow"
        s.lg0()
        s.i("s_nop 7\ns_nop 7")
        s.i(f"s_lshl_b32 s{sT0}, s2, 2")
        s.i(f"s_add_u32 s{sT0}, s{sT0}, s{sWAVE}")
        s.i(f"s_mul_i32 s{sT0}, s{sT0}, {stride}")
        s.i(f"s_add_u32 s{sT0}, s{sT0}, {base}")
        s.i(f"v_lshlrev_b32 v255, 2, v{self.vLANE}")
        for i, r in enumerate(regs):
            if r.startswith("a"):
                s.i(f"v_accvgpr_read_b32 v254, {r}"); src = "v254"
            else: src = r
            s.i(f"s_add_u32 s{sT1}, s{sT0}, {i*256}")
            s.vm(f"buffer_store_dword {src}, v255, {srd(S_WS)}, s{sT1} offen", "dump")
            s.i("s_nop 1")
        s.vm0()
        return s

    def build(self):
        steps = [self.prologue, self.phaseK, lambda: self.epiFeat("K"), self.phaseV, self.kv, self.phaseQ,
                 lambda: self.epiFeat("Q"), self.hop1, self.ocomp, self.p3]
        for i, st in enumerate(steps):
            if self.stop >= i: emit(self.P, st())
        self.finish()
        return self.P

    def xfrag(self, tt, ks):
        b = self.aX + (ks * 2 + tt) * 4
        return f"a[{b}:{b+3}]"

    def dma_x(self, lb):
        gs = []
        slot = (lb % 3) * 4096
        for tt in range(2):
            for q in range(2):
                g = S()
                g.i(f"s_add_u32 m0, s{sXW}, {slot + tt*2048 + q*1024}")
                g.vm(f"buffer_load_dwordx4 v{self.vXD+tt*2+q}, {srd(S_X)}, s{sXO+lb} offen lds", f"x{lb}")
                gs.append(g)
        return gs
    def dma_w(self, part, lb):
        base = {"K": R0, "V": R1, "Q": R0}[part]
        sr = {"K": S_WK, "V": S_WV, "Q": S_WQ}[part]
        A = S(); B = S()
        A.i(f"s_add_u32 m0, s{sW1280}, {base + lb*5120}")
        A.vm(f"buffer_load_dwordx4 v{self.vWD}, {srd(sr)}, s{sWOFS+lb} offen lds", f"W{part}{lb}")
        B.i(f"s_add_u32 m0, s{sW1280}, {base + lb*5120 + 1024}")
        B.i("s_mov_b64 exec, 0xffff")
        B.vm(f"buffer_load_dwordx4 v{self.vWD+1}, {srd(sr)}, s{sWOFS+lb} offen lds", f"W{part}{lb}")
        B.i("s_mov_b64 exec, -1")
        return [A, B]
    def dma_wo(self, ks, tag):
        A = S(); B = S()
        A.i(f"s_mov_b32 s{sSO}, {ks*40960}")
        A.i(f"s_add_u32 m0, s{sW1280}, {WO + ks*5120}")
        A.vm(f"buffer_load_dwordx4 v{self.vWOD}, {srd(S_WO)}, s{sSO} offen lds", tag)
        B.i(f"s_add_u32 m0, s{sW1280}, {WO + ks*5120 + 1024}")
        B.i("s_mov_b64 exec, 0xffff")
        B.vm(f"buffer_load_dwordx4 v{self.vWOD+1}, {srd(S_WO)}, s{sSO} offen lds", tag)
        B.i("s_mov_b64 exec, -1")
        return [A, B]

    def prologue(self):
        s = S()
        s.i("s_cmp_ge_u32 s2, 256")
        s.i("s_cbranch_scc1 L_end")
        if self.profile:
            ins = "s_memtime" if self.ticks is not None else "s_memrealtime"
            s.i(f"{ins} s[98:99]"); self.stampnames.append("start"); self.nstamp = 1
        s.i(f"s_load_dwordx8 s[{sKA}:{sKA+7}], s[0:1], 0")
        s.i(f"s_load_dwordx4 s[{sKA+8}:{sKA+11}], s[0:1], 32")
        s.i(f"s_load_dwordx2 s[{sKA+12}:{sKA+13}], s[0:1], 48")
        L = self.vLANE
        s.i(f"v_and_b32 v{L}, 63, v0")
        s.i(f"v_lshrrev_b32 v{self.vT}, 6, v0")
        s.i(f"v_readfirstlane_b32 s{sWAVE}, v{self.vT}")
        s.i(f"s_and_b32 s{sGRP}, s2, 7")
        s.i(f"s_lshr_b32 s{sT1}, s2, 3")
        s.i(f"s_lshr_b32 s{sT2}, s{sT1}, 4")
        s.i(f"s_lshl_b32 s{sTB}, s{sGRP}, 1")
        s.i(f"s_add_u32 s{sTB}, s{sTB}, s{sT2}")
        s.i(f"s_and_b32 s{sPJ}, s{sT1}, 15")
        s.i(f"s_and_b32 s{sCB}, s{sT1}, 7")
        s.i(f"s_lshr_b32 s{sT3}, s{sT1}, 3")
        s.i(f"s_lshl_b32 s{sTB3}, s{sGRP}, 2")
        s.i(f"s_add_u32 s{sTB3}, s{sTB3}, s{sT3}")
        s.i(f"s_mul_i32 s{sROT}, s{sPJ}, 10")
        s.i(f"s_lshr_b32 s{sROT}, s{sROT}, 4")
        s.i(f"s_mul_i32 s{sT2}, s{sT2}, 5")
        s.i(f"s_add_u32 s{sROT}, s{sROT}, s{sT2}")
        s.i(f"s_cmp_ge_u32 s{sROT}, 10")
        s.i(f"s_cselect_b32 s{sT1}, 10, 0")
        s.i(f"s_sub_u32 s{sROT}, s{sROT}, s{sT1}")
        if self.norot: s.i(f"s_mov_b32 s{sROT}, 0")
        t0, t1, t2, t3 = self.vT, self.vT + 1, self.vT + 2, self.vT + 3
        XD = self.vXD
        s.i(f"v_lshrrev_b32 v{t0}, 3, v{L}")
        s.i(f"v_and_b32 v{t1}, 7, v{L}")
        s.i(f"v_lshrrev_b32 v{t2}, 1, v{t0}")
        s.i(f"v_xor_b32 v{XD}, v{t1}, v{t2}")
        s.i(f"v_xor_b32 v{XD+1}, 4, v{XD}")
        s.i(f"v_lshlrev_b32 v{XD}, 4, v{XD}")
        s.i(f"v_lshlrev_b32 v{XD+1}, 4, v{XD+1}")
        s.i(f"s_movk_i32 s{sT2}, 1280")
        s.i(f"v_mad_u32_u24 v{XD}, v{t0}, s{sT2}, v{XD}")
        s.i(f"v_add_u32 v{t0}, 8, v{t0}")
        s.i(f"v_mad_u32_u24 v{XD+1}, v{t0}, s{sT2}, v{XD+1}")
        s.i(f"v_add_u32 v{XD+2}, 20480, v{XD}")
        s.i(f"v_add_u32 v{XD+3}, 20480, v{XD+1}")
        s.i(f"s_lshl_b32 s{sT0}, s{sTB}, 2")
        s.i(f"s_add_u32 s{sT0}, s{sT0}, s{sWAVE}")
        s.i(f"s_mul_i32 s{sT4}, s{sT0}, {32*1280}")
        s.i(f"s_mul_i32 s{sXW}, s{sWAVE}, 12288")
        s.i(f"s_add_u32 s{sXW}, s{sXW}, {XR}")
        s.i(f"s_mul_i32 s{sW1280}, s{sWAVE}, 1280")
        s.i(f"s_mul_i32 s{sT5}, s{sPJ}, 80")
        s.i(f"s_lshl_b32 s{sXO}, s{sROT}, 7")
        s.i(f"s_mul_i32 s{sWOFS}, s{sROT}, {64*3840}")
        s.i(f"s_mul_i32 s{sT0}, s{sWAVE}, 80")
        s.i(f"s_movk_i32 s{sT2}, 3840")
        s.i(f"s_mov_b32 s{sT3}, 52429")
        for e in range(2):
            s.i(f"v_add_u32 v{t0}, s{sT0}, v{L}")
            if e: s.i(f"v_add_u32 v{t0}, 64, v{t0}")
            s.i(f"v_mul_u32_u24 v{t1}, s{sT3}, v{t0}")
            s.i(f"v_lshrrev_b32 v{t1}, 18, v{t1}")
            s.i(f"v_mul_u32_u24 v{t2}, 5, v{t1}")
            s.i(f"v_sub_u32 v{t0}, v{t0}, v{t2}")
            s.i(f"v_and_b32 v{t2}, 0x28, v{t1}")
            s.i(f"v_and_b32 v{t3}, 1, v{t1}")
            s.i(f"v_lshl_or_b32 v{t2}, v{t3}, 4, v{t2}")
            s.i(f"v_bfe_u32 v{t3}, v{t1}, 4, 1")
            s.i(f"v_lshl_or_b32 v{t2}, v{t3}, 2, v{t2}")
            s.i(f"v_bfe_u32 v{t3}, v{t1}, 1, 2")
            s.i(f"v_or_b32 v{t2}, v{t2}, v{t3}")
            s.i(f"v_lshlrev_b32 v{t0}, 4, v{t0}")
            s.i(f"v_mad_u32_u24 v{self.vWD+e}, v{t2}, s{sT2}, v{t0}")
        s.i("s_waitcnt lgkmcnt(0)")
        def mk(sd, p, size, off=None):
            if off is None:
                s.i(f"s_mov_b32 s{sd}, s{p}")
                s.i(f"s_and_b32 s{sd+1}, s{p+1}, 0xffff")
                s.i(f"s_mov_b32 s{sd+2}, {size}")
            else:
                reg, const = off
                if const: s.i(f"s_add_u32 s{sT0}, s{reg}, {const}"); r = sT0
                else: r = reg
                s.i(f"s_add_u32 s{sd}, s{p}, s{r}")
                s.i(f"s_addc_u32 s{sd+1}, s{p+1}, 0")
                s.i(f"s_and_b32 s{sd+1}, s{sd+1}, 0xffff")
                s.i(f"s_sub_u32 s{sd+2}, {size}, s{r}")
            s.i(f"s_mov_b32 s{sd+3}, 0x20000")
        mk(S_X, sKA + 0, 2048 * 1280, (sT4, 0))
        for g in self.dma_x(0): s.extend(g)
        mk(S_WK, sKA + 2, 640 * 3840, (sT5, 1280))
        for g in self.dma_w("K", 0): s.extend(g)
        self.tick(s, "P_a")
        for lb in range(1, 10):
            s.i(f"s_add_u32 s{sXO+lb}, s{sXO+lb-1}, 128")
            s.i(f"s_add_u32 s{sWOFS+lb}, s{sWOFS+lb-1}, {64*3840}")
            s.i(f"s_cmp_eq_u32 s{sROT}, {10-lb}")
            s.i(f"s_cselect_b32 s{sXO+lb}, 0, s{sXO+lb}")
            s.i(f"s_cselect_b32 s{sWOFS+lb}, 0, s{sWOFS+lb}")
            if lb == 1:
                for g in self.dma_x(1)[:2]: s.extend(g)
        mk(S_WV, sKA + 2, 640 * 3840, (sT5, 2560))
        mk(S_WQ, sKA + 2, 640 * 3840, (sT5, 0))
        mk(S_PHI, sKA + 4, 25600)
        s.i(f"s_mul_i32 s{sT3}, s{sCB}, 160")
        mk(S_WO, sKA + 6, 640 * 1280, (sT3, 0))
        mk(S_OUT, sKA + 8, 2048 * 1280)
        mk(S_DBG, sKA + 10, 256)
        mk(S_WS, sKA + 12, self.ws_size)
        self.setup_basic(s)
        self.setup2(s)
        self.setup3(s)
        self.wo_offsets(s)
        self.tick(s, "P_b")
        for g in self.dma_x(1)[2:]: s.extend(g)
        for g in self.dma_w("K", 1): s.extend(g)
        self.phi_stage(s)
        if not self.opts.get("nopf"): self.prefill(s)
        else: s.i(f"v_mov_b32 v{self.vPST}, {OOB}")
        for g in self.dma_x(2): s.extend(g)
        for g in self.dma_w("K", 2): s.extend(g)
        self.stamp(s, "prologue")
        return s

    def setup_basic(self, s):
        L = self.vLANE
        a, b_, c_, d_ = self.vT, self.vT + 1, self.vT + 2, self.vT + 3
        s.i(f"v_lshrrev_b32 v{self.vG}, 4, v{L}")
        s.i(f"v_and_b32 v{self.vN}, 15, v{L}")
        s.i(f"v_lshrrev_b32 v{a}, 1, v{self.vN}")
        s.i(f"v_xor_b32 v{a}, v{a}, v{self.vG}")
        s.i(f"v_lshlrev_b32 v{a}, 4, v{a}")
        s.i(f"v_lshl_add_u32 v{a}, v{self.vN}, 7, v{a}")
        s.i(f"v_add_u32 v{self.vXA0}, s{sXW}, v{a}")
        s.i(f"v_xor_b32 v{a}, 64, v{a}")
        s.i(f"v_add_u32 v{self.vXA1}, s{sXW}, v{a}")
        s.i(f"v_bfe_u32 v{a}, v{L}, 2, 2")
        s.i(f"v_and_b32 v{b_}, 1, v{self.vG}")
        s.i(f"v_lshl_add_u32 v{a}, v{b_}, 2, v{a}")
        s.i(f"v_lshrrev_b32 v{b_}, 1, v{self.vG}")
        s.i(f"v_lshl_add_u32 v{a}, v{a}, 1, v{b_}")
        s.i(f"v_mul_u32_u24 v{a}, 80, v{a}")
        s.i(f"v_and_b32 v{b_}, 3, v{L}")
        s.i(f"v_and_b32 v{c_}, 1, v{b_}")
        s.i(f"v_lshrrev_b32 v{d_}, 1, v{b_}")
        s.i(f"v_mul_u32_u24 v{d_}, 5, v{d_}")
        s.i(f"v_lshl_add_u32 v{d_}, v{c_}, 1, v{d_}")
        s.i(f"v_lshl_add_u32 v{self.vP0}, v{d_}, 3, v{a}")
        s.i(f"v_xor_b32 v{c_}, 1, v{c_}")
        s.i(f"v_lshl_add_u32 v{self.vP2}, v{c_}, 5, v{self.vP0}")
        s.i(f"v_lshl_add_u32 v{self.vPV}, v{b_}, 3, v{a}")
        s.i(f"v_add_u32 v{self.vPV}, {R1}, v{self.vPV}")
        s.i(f"v_add_u32 v{self.vP2V}, {R1}, v{self.vP2}")
        s.i(f"s_mov_b32 s{sL2E}, 0x3fb8aa3b")
        s.i(f"s_getreg_b32 s{sFLAGV}, hwreg(HW_REG_XCC_ID, 0, 4)")
        s.i(f"s_or_b32 s{sFLAGV}, s{sFLAGV}, 0x10")

    def phi_stage(self, s):
        a = self.vT
        s.i(f"v_lshlrev_b32 v{a}, 4, v{self.vLANE}")
        s.i(f"s_mul_i32 s{sT0}, s{sPJ}, 1600")
        s.i(f"s_lshl_b32 s{sT1}, s{sWAVE}, 10")
        s.i(f"s_add_u32 s{sT0}, s{sT0}, s{sT1}")
        s.i(f"s_cmp_ge_u32 s{sWAVE}, 2")
        s.i(f"s_cselect_b32 s{sT0}, 0x100000, s{sT0}")
        s.i(f"s_add_u32 m0, s{sT1}, {WP}")
        s.i(f"v_add_u32 v{a}, s{sT0}, v{a}")
        s.vm(f"buffer_load_dwordx4 v{a}, {srd(S_PHI)}, 0 offen lds", "phi")

    def prefill(self, s):
        a, b_, c_ = self.vT, self.vT + 1, self.vT + 2
        s0 = self.vT + 4
        for i in range(4): s.i(f"v_mov_b32 v{s0+i}, -1")
        s.i(f"s_lshl_b32 s{sT0}, s{sPJ}, 4")
        s.i(f"s_add_u32 s{sT0}, s{sT0}, s{sTB}")
        s.i(f"s_mul_i32 s{sT0}, s{sT0}, {PS}")
        s.i(f"v_lshlrev_b32 v{a}, 4, v0")
        s.i(f"v_add_u32 v{self.vPST}, s{sT0}, v{a}")
        s.i(f"v_mov_b32 v{b_}, {OOB}")
        s.i(f"v_cmp_gt_u32 vcc, 224, v0")
        s.i(f"v_cndmask_b32 v{self.vPST}, v{b_}, v{self.vPST}, vcc")
        s.vm(f"buffer_store_dwordx4 v[{s0}:{s0+3}], v{self.vPST}, {srd(S_WS)}, 0 offen sc1", "pf")
        s.i(f"s_lshl_b32 s{sT0}, s{sTB}, 3")
        s.i(f"s_mul_i32 s{sT0}, s{sT0}, 20480")
        s.i(f"s_mul_i32 s{sT1}, s{sPJ}, 1280")
        s.i(f"s_add_u32 s{sT0}, s{sT0}, s{sT1}")
        s.i(f"s_add_u32 s{sT0}, s{sT0}, {OBUF}")
        s.i(f"s_mov_b32 s{sT1}, 52429")
        s.i(f"s_movk_i32 s{sT2}, 0x5000")
        for j in range(3):
            s.i(f"v_add_u32 v{a}, {256*j}, v0")
            s.i(f"v_lshrrev_b32 v{b_}, 4, v{a}")
            s.i(f"v_mul_u32_u24 v{b_}, s{sT1}, v{b_}")
            s.i(f"v_lshrrev_b32 v{b_}, 18, v{b_}")
            s.i(f"v_mul_u32_u24 v{c_}, 80, v{b_}")
            s.i(f"v_sub_u32 v{c_}, v{a}, v{c_}")
            s.i(f"v_lshlrev_b32 v{c_}, 4, v{c_}")
            s.i(f"v_mad_u32_u24 v{b_}, v{b_}, s{sT2}, v{c_}")
            if j == 2:
                s.i(f"v_mov_b32 v{c_}, {OOB}")
                s.i(f"v_cmp_gt_u32 vcc, 640, v{a}")
                s.i(f"v_cndmask_b32 v{b_}, v{c_}, v{b_}, vcc")
            s.vm(f"buffer_store_dwordx4 v[{s0}:{s0+3}], v{b_}, {srd(S_WS)}, s{sT0} offen sc1", "pf")

    def setup2(self, s):
        L = self.vLANE
        a, b_, c_, d_, e_, f_ = [self.vT + i for i in range(6)]
        s.i(f"s_mul_i32 s{sT3}, s{sWAVE}, 5120")
        s.i(f"s_add_u32 s{sT3}, s{sT3}, {PHI}")
        s.i(f"v_and_b32 v{a}, 1, v{self.vG}")
        s.i(f"v_lshl_add_u32 v{a}, v{a}, 4, v{self.vN}")
        s.i(f"v_mul_u32_u24 v{a}, 160, v{a}")
        s.i(f"v_lshrrev_b32 v{b_}, 1, v{self.vG}")
        s.i(f"v_mul_u32_u24 v{b_}, 80, v{b_}")
        s.i(f"v_add3_u32 v{self.vPKW}, v{a}, v{b_}, s{sT3}")
        s.i(f"s_lshr_b32 s{sT2}, s{sWAVE}, 1")
        s.i(f"s_mul_i32 s{sT3}, s{sT2}, 80")
        s.i(f"s_add_u32 s{sT3}, s{sT3}, {PHI}")
        s.i(f"v_bfe_u32 v{a}, v{L}, 2, 2")
        s.i(f"v_lshl_add_u32 v{a}, v{self.vG}, 2, v{a}")
        s.i(f"v_mul_u32_u24 v{a}, 160, v{a}")
        s.i(f"v_and_b32 v{b_}, 3, v{L}")
        s.i(f"v_lshl_add_u32 v{a}, v{b_}, 3, v{a}")
        s.i(f"v_add_u32 v{self.vPKR}, s{sT3}, v{a}")
        s.i(f"v_lshlrev_b32 v{a}, 4, v{L}")
        s.i(f"s_mul_i32 s{sT3}, s{sWAVE}, 3072")
        s.i(f"s_add_u32 s{sT3}, s{sT3}, {BV}")
        s.i(f"v_add_u32 v{self.vBVW}, s{sT3}, v{a}")
        s.i(f"s_and_b32 s{sT1}, s{sWAVE}, 1")
        s.i(f"s_cmp_eq_u32 s{sT1}, 1")
        s.i(f"s_cselect_b32 s{sT3}, 2, s{sT2}")
        s.i(f"s_lshl_b32 s{sT3}, s{sT3}, 10")
        s.i(f"s_add_u32 s{sT3}, s{sT3}, {BV}")
        s.i(f"v_add_u32 v{self.vBVR}, s{sT3}, v{a}")
        s.i(f"v_and_b32 v{b_}, 3, v{self.vN}")
        s.i(f"v_add_u32 v{b_}, 16, v{b_}")
        s.i(f"v_cmp_eq_u32 vcc, 4, v{self.vN}")
        s.i(f"v_cndmask_b32 v{b_}, v{b_}, 20, vcc")
        s.i(f"s_mov_b64 s[{sM}:{sM+1}], vcc")
        s.i(f"v_lshrrev_b32 v{c_}, 2, v{self.vN}")
        s.i(f"s_lshl_b32 s{sT3}, s{sT2}, 1")
        s.i(f"v_cmp_eq_u32 vcc, s{sT3}, v{c_}")
        s.i(f"s_or_b64 s[{sM}:{sM+1}], s[{sM}:{sM+1}], vcc")
        s.i(f"s_cmp_eq_u32 s{sT1}, 1")
        s.i(f"s_cselect_b64 s[{sM}:{sM+1}], s[{sM}:{sM+1}], -1")
        s.i(f"s_cselect_b32 s{sT4}, 1, 0")
        s.i(f"v_cmp_eq_u32 vcc, 1, s{sT4}")
        s.i(f"v_cndmask_b32 v{b_}, v{self.vN}, v{b_}, vcc")
        s.i(f"s_mul_i32 s{sT3}, s{sT2}, 21")
        s.i(f"v_add_u32 v{b_}, s{sT3}, v{b_}")
        s.i(f"v_mul_u32_u24 v{b_}, 80, v{b_}")
        s.i(f"v_lshl_add_u32 v{b_}, v{self.vG}, 3, v{b_}")
        s.i(f"v_add_u32 v{b_}, {KVT}, v{b_}")
        s.i(f"v_lshlrev_b32 v{c_}, 3, v{L}")
        s.i(f"v_add_u32 v{c_}, {DUM}, v{c_}")
        s.i(f"v_cndmask_b32 v{self.vSTW}, v{c_}, v{b_}, s[{sM}:{sM+1}]")
        s.i(f"v_cmp_gt_u32 vcc, 2, v{self.vG}")
        s.i(f"v_cndmask_b32 v{self.vSTW2}, v{c_}, v{self.vSTW}, vcc")
        s.i(f"v_lshlrev_b32 v{a}, 4, v0")
        s.i(f"v_add_u32 v{self.vSTR}, {KVT}, v{a}")
        s.i(f"v_mov_b32 v{b_}, {DUM}")
        s.i(f"v_cmp_gt_u32 vcc, 224, v0")
        s.i(f"v_cndmask_b32 v{self.vSTR}, v{b_}, v{self.vSTR}, vcc")
        s.i(f"s_mul_i32 s{sT0}, s{sPJ}, {16*PS}")
        s.i(f"s_lshl_b32 s{sT1}, s{sWAVE}, 8")
        s.i(f"s_add_u32 s{sT2}, s{sT0}, s{sT1}")
        s.i(f"v_mul_u32_u24 v{a}, {PS}, v{self.vG}")
        s.i(f"v_lshl_add_u32 v{a}, v{self.vN}, 4, v{a}")
        s.i(f"v_add_u32 v{self.vH1}, s{sT2}, v{a}")
        s.i(f"v_lshrrev_b32 v{a}, 2, v{L}")
        s.i(f"v_mul_u32_u24 v{a}, {PS}, v{a}")
        s.i(f"v_and_b32 v{b_}, 3, v{L}")
        s.i(f"v_lshl_add_u32 v{a}, v{b_}, 10, v{a}")
        s.i(f"v_add_u32 v{self.vS1}, s{sT0}, v{a}")
        s.i(f"v_and_b32 v{a}, 1, v{self.vN}")
        s.i(f"v_mov_b32 v{b_}, 0x3f80")
        s.i(f"v_lshlrev_b32 v{a}, 4, v{a}")
        s.i(f"v_lshlrev_b32 v{b_}, v{a}, v{b_}")
        s.i(f"v_lshrrev_b32 v{a}, 1, v{self.vN}")
        for k in range(4):
            s.i(f"v_cmp_eq_u32 vcc, {k}, v{a}")
            s.i(f"v_cndmask_b32 v{self.vSEL+k}, 0, v{b_}, vcc")
        s.i(f"v_lshlrev_b32 v{a}, 4, v{self.vN}")
        s.i(f"v_lshl_add_u32 v{a}, v{self.vG}, 3, v{a}")
        s.i(f"s_add_u32 s{sT1}, s{sT1}, {KVT}")
        s.i(f"v_add_u32 v{self.vKVW}, s{sT1}, v{a}")
        s.i(f"v_lshrrev_b32 v{a}, 2, v{self.vN}")
        s.i(f"v_cmp_eq_u32 s[{sONE}:{sONE+1}], 1, v{a}")
        s.i(f"v_lshlrev_b32 v{self.vFLG}, 2, v{L}")

    def setup3(self, s):
        L = self.vLANE
        a, b_, c_, d_, e_ = [self.vT + i for i in range(5)]
        s.i(f"v_lshrrev_b32 v{a}, 1, v{self.vG}")
        s.i(f"v_mul_u32_u24 v{b_}, 1680, v{a}")
        s.i(f"v_and_b32 v{c_}, 3, v{self.vN}")
        s.i(f"v_mul_u32_u24 v{c_}, 80, v{c_}")
        s.i(f"v_add_u32 v{b_}, v{b_}, v{c_}")
        s.i(f"v_add_u32 v{b_}, {KVT}, v{b_}")
        s.i(f"v_mul_u32_u24 v{c_}, 320, v{a}")
        s.i(f"v_add_u32 v{self.vOA}, v{b_}, v{c_}")
        s.i(f"v_xor_b32 v{c_}, 1, v{a}")
        s.i(f"v_mul_u32_u24 v{c_}, 1280, v{c_}")
        s.i(f"v_add_u32 v{self.vOB}, v{b_}, v{c_}")
        s.i(f"v_add_u32 v{self.vOC}, 1600, v{b_}")
        s.i(f"v_lshrrev_b32 v{c_}, 2, v{self.vN}")
        s.i(f"v_cmp_eq_u32 vcc, v{c_}, v{self.vG}")
        s.i(f"v_mov_b32 v{d_}, {ZR}")
        s.i(f"v_cndmask_b32 v{self.vOA}, v{d_}, v{self.vOA}, vcc")
        s.i(f"v_cndmask_b32 v{self.vOB}, v{d_}, v{self.vOB}, vcc")
        s.i(f"v_cndmask_b32 v{self.vOC}, v{d_}, v{self.vOC}, vcc")
        s.i(f"s_lshl_b32 s{sT0}, s{sTB}, 3")
        s.i(f"s_lshl_b32 s{sT1}, s{sWAVE}, 1")
        s.i(f"s_add_u32 s{sT0}, s{sT0}, s{sT1}")
        s.i(f"s_mul_i32 s{sT0}, s{sT0}, 20480")
        s.i(f"s_mul_i32 s{sT1}, s{sPJ}, 1280")
        s.i(f"s_add_u32 s{sT0}, s{sT0}, s{sT1}")
        s.i(f"s_add_u32 s{sT0}, s{sT0}, {OBUF}")
        s.i(f"v_and_b32 v{b_}, 1, v{self.vG}")
        s.i(f"s_movk_i32 s{sT2}, 0x5000")
        s.i(f"v_mul_u32_u24 v{b_}, s{sT2}, v{b_}")
        s.i(f"v_lshl_add_u32 v{b_}, v{self.vN}, 4, v{b_}")
        s.i(f"v_add_u32 v{b_}, s{sT0}, v{b_}")
        s.i(f"v_mul_u32_u24 v{c_}, 768, v{a}")
        s.i(f"v_add_u32 v{self.vOS1}, v{b_}, v{c_}")
        s.i(f"v_lshl_add_u32 v{self.vOS2}, v{a}, 3, v{b_}")
        s.i(f"v_add_u32 v{self.vOS2}, 512, v{self.vOS2}")
        s.i(f"s_and_b32 s{sT3}, s{sWAVE}, 1")
        s.i(f"v_bfe_u32 v{a}, v{L}, 2, 2")
        s.i(f"v_lshl_add_u32 v{a}, v{self.vG}, 2, v{a}")
        s.i(f"v_mul_u32_u24 v{a}, 160, v{a}")
        s.i(f"v_and_b32 v{b_}, 3, v{L}")
        s.i(f"v_mul_u32_u24 v{b_}, 40, v{b_}")
        s.i(f"s_mul_i32 s{sT0}, s{sT3}, 51200")
        s.i(f"s_add_u32 s{sT0}, s{sT0}, {WO}")
        s.i(f"v_add3_u32 v{self.vWOA}, v{a}, v{b_}, s{sT0}")
        s.i(f"s_lshl_b32 s{sT0}, s{sTB3}, 2")
        s.i(f"s_add_u32 s{sT1}, s{sT0}, s{sWAVE}")
        s.i(f"s_xor_b32 s{sT2}, s{sWAVE}, 1")
        s.i(f"s_add_u32 s{sT2}, s{sT0}, s{sT2}")
        s.i(f"s_mul_i32 s{sT4}, s{sT3}, 10240")
        s.i(f"s_add_u32 s{sT4}, s{sT4}, {OBUF}")
        s.i(f"s_mul_i32 s{sT0}, s{sT1}, 20480")
        s.i(f"s_add_u32 s{sT0}, s{sT0}, s{sT4}")
        s.i(f"v_lshlrev_b32 v{a}, 4, v{L}")
        s.i(f"v_add_u32 v{self.vOF}, s{sT0}, v{a}")
        s.i(f"v_and_b32 v{b_}, 7, v{L}")
        s.i(f"v_mul_u32_u24 v{b_}, 1280, v{b_}")
        s.i(f"v_add_u32 v{b_}, 512, v{b_}")
        s.i(f"v_add_u32 v{c_}, s{sT0}, v{b_}")
        s.i(f"s_mul_i32 s{sT0}, s{sT2}, 20480")
        s.i(f"s_add_u32 s{sT0}, s{sT0}, s{sT4}")
        s.i(f"v_add_u32 v{self.vOF2}, s{sT0}, v{a}")
        s.i(f"v_add_u32 v{d_}, s{sT0}, v{b_}")
        s.i(f"v_bfe_u32 v{b_}, v{L}, 3, 1")
        s.i(f"v_cmp_eq_u32 vcc, 0, v{b_}")
        s.i(f"v_cndmask_b32 v{self.vS2}, v{d_}, v{c_}, vcc")
        s.i(f"v_bfe_u32 v{b_}, v{L}, 4, 1")
        s.i(f"v_lshl_add_u32 v{self.vS2}, v{b_}, 3, v{self.vS2}")
        s.i(f"s_mul_i32 s{sT0}, s{sWAVE}, 5120")
        s.i(f"v_add_u32 v{self.vEXW}, s{sT0}, v{a}")
        s.i(f"s_xor_b32 s{sT0}, s{sWAVE}, 1")
        s.i(f"s_mul_i32 s{sT0}, s{sT0}, 5120")
        s.i(f"v_add_u32 v{self.vEXR}, s{sT0}, v{a}")
        s.i(f"s_lshl_b32 s{sT1}, s{sT1}, 4")
        s.i(f"v_add_u32 v{a}, s{sT1}, v{self.vN}")
        s.i(f"s_movk_i32 s{sT2}, 1280")
        s.i(f"v_mul_u32_u24 v{a}, s{sT2}, v{a}")
        s.i(f"v_mul_u32_u24 v{b_}, 40, v{self.vG}")
        s.i(f"s_mul_i32 s{sT0}, s{sCB}, 160")
        s.i(f"v_add3_u32 v{self.vOUT}, v{a}, v{b_}, s{sT0}")

    def wo_offsets(self, s):
        a, b_, c_, d_ = [self.vT + i for i in range(4)]
        s.i(f"s_movk_i32 s{sT2}, 1280")
        s.i(f"s_mov_b32 s{sT3}, 52429")
        s.i(f"s_mul_i32 s{sT0}, s{sWAVE}, 80")
        for e in range(2):
            s.i(f"v_add_u32 v{a}, s{sT0}, v{self.vLANE}")
            if e: s.i(f"v_add_u32 v{a}, 64, v{a}")
            s.i(f"v_lshrrev_b32 v{b_}, 1, v{a}")
            s.i(f"v_mul_u32_u24 v{b_}, s{sT3}, v{b_}")
            s.i(f"v_lshrrev_b32 v{b_}, 18, v{b_}")
            s.i(f"v_mul_u32_u24 v{c_}, 10, v{b_}")
            s.i(f"v_sub_u32 v{a}, v{a}, v{c_}")
            s.i(f"v_and_b32 v{c_}, 12, v{b_}")
            s.i(f"v_lshlrev_b32 v{c_}, 1, v{c_}")
            s.i(f"v_lshrrev_b32 v{d_}, 4, v{b_}")
            s.i(f"v_lshl_or_b32 v{c_}, v{d_}, 2, v{c_}")
            s.i(f"v_and_b32 v{d_}, 3, v{b_}")
            s.i(f"v_or_b32 v{c_}, v{c_}, v{d_}")
            s.i(f"v_lshlrev_b32 v{a}, 4, v{a}")
            s.i(f"v_mad_u32_u24 v{self.vWOD+e}, v{c_}, s{sT2}, v{a}")

    def frag_reads(self, part, ks, buf, tag):
        out = []
        r = self.vAF + buf * 12
        for t in range(3):
            if part == "V":
                va = self.vPV if t < 2 else self.vP2V
                off = ks * 2560 + (40 * t if t < 2 else 0)
            else:
                va = self.vP0 if t < 2 else self.vP2
                off = R0 + ks * 2560 + (8 * t if t < 2 else 0)
            out.append(S().lds(f"ds_read_b64_tr_b16 v[{r+4*t}:{r+4*t+1}], v{va} offset:{off}", tag))
            out.append(S().lds(f"ds_read_b64_tr_b16 v[{r+4*t+2}:{r+4*t+3}], v{va} offset:{off+1280}", tag))
        return out
    def acc(self, tt, t):
        b = self.vACC + (tt * 3 + t) * 4
        return f"v[{b}:{b+3}]"
    def mfmas(self, ks, buf, first, orient):
        s = S()
        r = self.vAF + buf * 12
        for t in range(3):
            for tt in range(2):
                w = f"v[{r+4*t}:{r+4*t+3}]"
                x = self.xfrag(tt, ks)
                c = "0" if first else self.acc(tt, t)
                if orient == "T": s.i(f"v_mfma_f32_16x16x32_bf16 {self.acc(tt,t)}, {w}, {x}, {c}")
                else:             s.i(f"v_mfma_f32_16x16x32_bf16 {self.acc(tt,t)}, {x}, {w}, {c}")
        return s

    def k_reads(self, lb):
        out = []
        slot = (lb % 3) * 4096
        for ksl in range(2):
            ks = 2 * lb + ksl
            va = self.vXA0 if ksl == 0 else self.vXA1
            for tt in range(2):
                out.append(S().lds(f"ds_read_b128 {self.xfrag(tt,ks)}, v{va} offset:{slot + tt*2048}", f"kr{lb}"))
            out += self.frag_reads("K", ks, (2 * lb + ksl) % 4, f"kr{lb}")
        return out

    def phaseK(self):
        s = S()
        s.c("---- phase K ----")
        def ready(lb):
            tags = [f"x{lb}", f"WK{lb}"]
            if lb == 3: tags += ["phi", "pf"]
            self.tick(s, f"K{lb}_a")
            s.vmw(*tags)
            s.bar()
            self.tick(s, f"K{lb}_b")
        ready(0)
        for g in self.k_reads(0): s.extend(g)
        for lb in range(10):
            nxt = []
            if lb + 1 < 10:
                ready(lb + 1)
                nxt = self.k_reads(lb + 1)
            dm = []
            if lb + 3 < 10: dm = self.dma_x(lb + 3) + self.dma_w("K", lb + 3)
            elif lb < 9: dm = self.dma_w("V", lb - 7)
            m = S()
            m.lgw(f"kr{lb}")
            m.extend(self.mfmas(2 * lb, (2 * lb) % 4, lb == 0, "T"))
            m.extend(self.mfmas(2 * lb + 1, (2 * lb + 1) % 4, False, "T"))
            merged = S()
            gi = 0; di = 0; nm = 0
            for op in m:
                merged.append(op)
                if is_mfma(op):
                    nm += 1
                    k = 2 if gi < 8 else 1
                    for _ in range(k):
                        if gi < len(nxt): merged.extend(nxt[gi]); gi += 1
                    if nm % 2 == 0 and di < len(dm): merged.extend(dm[di]); di += 1
            while gi < len(nxt): merged.extend(nxt[gi]); gi += 1
            while di < len(dm): merged.extend(dm[di]); di += 1
            s.extend(merged)
            if lb == 3:
                self.publish_flag(s)
                self.fmap_consts(s)
        s.bar()
        self.stamp(s, "Kgemm")
        if self.dump == "K":
            s.extend(self.dump_regs([f"v{self.vACC+i}" for i in range(24)], "accK"))
            s.extend(self.dump_regs([f"a{self.aF+i}" for i in range(60)], "fc"))
        return s

    def publish_flag(self, s):
        a, b_ = self.vT, self.vT + 1
        s.i(f"s_cmp_lg_u32 s{sWAVE}, 0")
        s.i("s_cbranch_scc1 L_noflag")
        s.i(f"v_mov_b32 v{a}, s2")
        s.i(f"v_mov_b32 v{b_}, s{sFLAGV}")
        s.i("s_mov_b64 exec, 1")
        s.vm(f"buffer_store_byte v{b_}, v{a}, {srd(S_DBG)}, 0 offen sc1", "flag", True)
        s.i("s_mov_b64 exec, -1")
        s.i("L_noflag:")

    def fmap_consts(self, s):
        L = self.vLANE
        a, b_, c_, d_ = self.vT, self.vT + 1, self.vT + 2, self.vT + 3
        A0, A1, X0, X1 = self.vT + 4, self.vT + 5, self.vT + 6, self.vT + 7
        s.i(f"v_bfe_u32 v{a}, v{L}, 2, 2")
        s.i(f"v_and_b32 v{b_}, 3, v{L}")
        s.i(f"v_lshrrev_b32 v{c_}, 1, v{self.vG}")
        s.i(f"v_mul_u32_u24 v{d_}, 800, v{c_}")
        s.i(f"v_mul_u32_u24 v{a}, 40, v{a}")
        s.i(f"v_add_u32 v{d_}, v{d_}, v{a}")
        s.i(f"v_add_u32 v{d_}, {WP}, v{d_}")
        s.i(f"v_and_b32 v{a}, 1, v{self.vG}")
        s.i(f"v_mul_u32_u24 v{A0}, 320, v{a}")
        s.i(f"v_add_u32 v{A0}, v{A0}, v{d_}")
        s.i(f"v_add_u32 v{X0}, 640, v{d_}")
        s.i(f"v_mov_b32 v{A1}, {ZR}")
        s.i(f"v_lshrrev_b32 v{d_}, 1, v{b_}")
        s.i(f"v_cmp_eq_u32 s[{sM}:{sM+1}], v{d_}, v{c_}")
        s.i(f"v_and_b32 v{d_}, 1, v{b_}")
        s.i(f"v_cmp_eq_u32 s[{sM2}:{sM2+1}], 0, v{d_}")
        s.i(f"v_cmp_eq_u32 vcc, 0, v{a}")
        s.i(f"s_and_b64 s[{sT0}:{sT0+1}], s[{sM}:{sM+1}], s[{sM2}:{sM2+1}]")
        s.i(f"s_andn2_b64 s[{sT2}:{sT2+1}], s[{sM}:{sM+1}], s[{sM2}:{sM2+1}]")
        s.i(f"s_and_b64 s[{sM}:{sM+1}], s[{sT0}:{sT0+1}], vcc")
        s.i(f"s_and_b64 s[{sM2}:{sM2+1}], s[{sT2}:{sT2+1}], vcc")
        s.i("s_nop 1")
        s.i(f"v_cndmask_b32 v{a}, v{A1}, v{A0}, s[{sT2}:{sT2+1}]")
        s.i(f"v_cndmask_b32 v{A0}, v{A1}, v{A0}, s[{sT0}:{sT0+1}]")
        s.i(f"v_cndmask_b32 v{X1}, v{A1}, v{X0}, s[{sM2}:{sM2+1}]")
        s.i(f"v_cndmask_b32 v{X0}, v{A1}, v{X0}, s[{sM}:{sM+1}]")
        s.i(f"v_mov_b32 v{A1}, v{a}")
        for t in range(5):
            f = self.aF + t * 12
            s.lds(f"ds_read_b64_tr_b16 a[{f}:{f+1}], v{A0} offset:{8*t}", "fc")
            s.lds(f"ds_read_b64_tr_b16 a[{f+2}:{f+3}], v{A0} offset:{8*t+160}", "fc")
            s.lds(f"ds_read_b64_tr_b16 a[{f+4}:{f+5}], v{A1} offset:{8*t}", "fc")
            s.lds(f"ds_read_b64_tr_b16 a[{f+6}:{f+7}], v{A1} offset:{8*t+160}", "fc")
            s.lds(f"ds_read_b64_tr_b16 a[{f+8}:{f+9}], v{X0} offset:{8*t}", "fc")
            s.lds(f"ds_read_b64_tr_b16 a[{f+10}:{f+11}], v{X1} offset:{8*t}", "fc")

    def epi_body(self, which):
        s = S()
        B = self.vB1; PP = self.vPP; E = self.vE
        def A(tt, t, r): return self.vACC + (tt * 3 + t) * 4 + r
        if which == "K": s.lgw("fc")
        for tt in range(2):
            for t in range(2):
                s.i(f"v_cvt_pk_bf16_f32 v{B+4*tt+2*t}, v{A(tt,t,0)}, v{A(tt,t,1)}")
                s.i(f"v_cvt_pk_bf16_f32 v{B+4*tt+2*t+1}, v{A(tt,t,2)}, v{A(tt,t,3)}")
        for tt in range(2):
            s.i(f"v_cvt_pk_bf16_f32 v{B+8+2*tt}, v{A(tt,2,0)}, v{A(tt,2,1)}")
            s.i(f"v_cvt_pk_bf16_f32 v{B+8+2*tt+1}, v{A(tt,2,2)}, v{A(tt,2,3)}")
        for j in range(3):
            for t in range(5):
                f = self.aF + t * 12 + 4 * j
                c = "0" if j == 0 else f"v[{PP+4*t}:{PP+4*t+3}]"
                s.i(f"v_mfma_f32_16x16x32_bf16 v[{PP+4*t}:{PP+4*t+3}], a[{f}:{f+3}], v[{B+4*j}:{B+4*j+3}], {c}")
        if self.dump == "P" + which:
            s.extend(self.dump_regs([f"v{PP+i}" for i in range(20)], "P" + which))
        mx, mn, sp, sn = self.vT, self.vT + 2, self.vT + 4, self.vT + 6
        s.i(f"v_max3_f32 v{mx}, v{PP}, v{PP+1}, v{PP+2}")
        s.i(f"v_min3_f32 v{mn}, v{PP}, v{PP+1}, v{PP+2}")
        for i in range(3, 19, 2):
            s.i(f"v_max3_f32 v{mx}, v{mx}, v{PP+i}, v{PP+i+1}")
            s.i(f"v_min3_f32 v{mn}, v{mn}, v{PP+i}, v{PP+i+1}")
        s.i(f"v_max_f32 v{mx}, v{mx}, v{PP+19}")
        s.i(f"v_min_f32 v{mn}, v{mn}, v{PP+19}")
        s.i(f"v_mul_f32 v{mx}, s{sL2E}, v{mx}")
        s.i(f"v_mul_f32 v{mn}, s{sL2E}, v{mn}")
        pk = self.opts.get("pk", True)
        if pk:
            s.i(f"s_mov_b32 s{sT0}, s{sL2E}")
            s.i(f"s_mov_b32 s{sT0+1}, s{sL2E}")
            for i in range(0, 20, 2):
                s.i(f"v_pk_fma_f32 v[{E+i}:{E+i+1}], v[{PP+i}:{PP+i+1}], s[{sT0}:{sT0+1}], v[{mx}:{mx+1}] op_sel_hi:[1,1,0] neg_lo:[0,0,1] neg_hi:[0,0,1]")
                s.i(f"v_pk_fma_f32 v[{E+20+i}:{E+20+i+1}], v[{PP+i}:{PP+i+1}], s[{sT0}:{sT0+1}], v[{mn}:{mn+1}] op_sel_hi:[1,1,0] neg_lo:[1,0,0] neg_hi:[1,0,0]")
        else:
            for i in range(20):
                s.i(f"v_fma_f32 v{E+i}, v{PP+i}, s{sL2E}, -v{mx}")
                s.i(f"v_fma_f32 v{E+20+i}, -v{PP+i}, s{sL2E}, v{mn}")
        for i in range(40): s.i(f"v_exp_f32 v{E+i}, v{E+i}")
        if pk:
            s.i(f"v_pk_add_f32 v[{sp}:{sp+1}], v[{E}:{E+1}], v[{E+2}:{E+3}]")
            s.i(f"v_pk_add_f32 v[{sn}:{sn+1}], v[{E+20}:{E+21}], v[{E+22}:{E+23}]")
            for i in range(4, 20, 2):
                s.i(f"v_pk_add_f32 v[{sp}:{sp+1}], v[{sp}:{sp+1}], v[{E+i}:{E+i+1}]")
                s.i(f"v_pk_add_f32 v[{sn}:{sn+1}], v[{sn}:{sn+1}], v[{E+20+i}:{E+20+i+1}]")
            s.i(f"v_add_f32 v{sp}, v{sp}, v{sp+1}")
            s.i(f"v_add_f32 v{sn}, v{sn}, v{sn+1}")
        else:
            s.i(f"v_add_f32 v{sp}, v{E}, v{E+1}")
            s.i(f"v_add_f32 v{sn}, v{E+20}, v{E+21}")
            for i in range(2, 20):
                s.i(f"v_add_f32 v{sp}, v{sp}, v{E+i}")
                s.i(f"v_add_f32 v{sn}, v{sn}, v{E+20+i}")
        s.i(f"v_rcp_f32 v{sp}, v{sp}")
        s.i(f"v_rcp_f32 v{sn}, v{sn}")
        if pk:
            for i in range(0, 20, 2):
                s.i(f"v_pk_mul_f32 v[{E+i}:{E+i+1}], v[{E+i}:{E+i+1}], v[{sp}:{sp+1}] op_sel_hi:[1,0]")
                s.i(f"v_pk_mul_f32 v[{E+20+i}:{E+20+i+1}], v[{E+20+i}:{E+20+i+1}], v[{sn}:{sn+1}] op_sel_hi:[1,0]")
        else:
            for i in range(20):
                s.i(f"v_mul_f32 v{E+i}, v{E+i}, v{sp}")
                s.i(f"v_mul_f32 v{E+20+i}, v{E+20+i}, v{sn}")
        for i in range(20):
            s.i(f"v_cvt_pk_bf16_f32 v{self.vPHI+i}, v{E+2*i}, v{E+2*i+1}")
            if which == "K" and i % 4 == 3:
                j = i // 4
                s.lds(f"ds_write_b128 v{self.vPKW}, v[{self.vPHI+4*j}:{self.vPHI+4*j+3}] offset:{16*j}", "pkw")
        return s

    def epiFeat(self, which):
        s = S(); s.c(f"---- feature epilogue {which} ----")
        body = self.epi_body(which)
        if which == "K":
            bg = [x for lb in range(2, 10) for x in self.dma_w("V", lb)]
        else:
            bg = self.bg_qe
        body = weave_frac(body, bg, lo=0.05, hi=0.95)
        s.extend(body)
        self.stamp(s, "epi" + which)
        if self.dump == "PHI" + which:
            s.extend(self.dump_regs([f"v{self.vPHI+i}" for i in range(20)], "PHI" + which))
        return s

    def gemm_resident(self, part, bg, bg_start=0, waits=(0, 8, 16), bg_end=20):
        s = S()
        orient = "N" if part == "V" else "T"
        def ready(ks):
            if ks in waits:
                nxt = min([w for w in waits if w > ks] + [20])
                s.vmw(*[f"W{part}{b}" for b in range(ks // 2, nxt // 2)])
                s.bar()
        ready(0)
        for g in self.frag_reads(part, 0, 0, f"{part}f0"): s.extend(g)
        for g in self.frag_reads(part, 1, 1, f"{part}f1"): s.extend(g)
        bg = list(bg)
        nb = len(bg)
        slots = list(range(bg_start, bg_end))
        plan = {}
        for i in range(nb):
            plan.setdefault(slots[i * len(slots) // max(nb, 1)], []).append(bg[i])
        for ks in range(20):
            self.tick(s, f"{part}{ks:02d}")
            nxt = []
            if ks + 2 < 20:
                ready(ks + 2)
                nxt = self.frag_reads(part, ks + 2, (ks + 2) % 4, f"{part}f{ks+2}")
            s.lgw(f"{part}f{ks}")
            m = self.mfmas(ks, ks % 4, ks == 0, orient)
            j = 0
            extra = plan.get(ks, [])
            for op in m:
                s.append(op)
                if j < len(nxt): s.extend(nxt[j])
                j += 1
                if j == 3 and extra:
                    for g in extra: s.extend(g)
        return s

    def phaseV(self):
        s = S(); s.c("---- phase V ----")
        bg = [x for lb in range(10) for x in self.dma_w("Q", lb)] + [x for ks in (17, 18, 19) for x in self.dma_wo(ks, "woC")]
        s.extend(self.gemm_resident("V", bg))
        self.stamp(s, "Vgemm")
        if self.dump == "V":
            s.extend(self.dump_regs([f"v{self.vACC+i}" for i in range(24)], "accV"))
        return s

    def kv(self):
        s = S(); s.c("---- kv partial ----")
        B = self.vB1
        def A(tt, t, r): return self.vACC + (tt * 3 + t) * 4 + r
        AF = self.vAF
        s.i(f"v_mov_b32 v{self.vT}, 0x3f803f80")
        for t in range(3):
            for tt in range(2):
                s.i(f"v_cvt_pk_bf16_f32 v{B+4*t+2*tt}, v{A(tt,t,0)}, v{A(tt,t,1)}")
                s.i(f"v_cvt_pk_bf16_f32 v{B+4*t+2*tt+1}, v{A(tt,t,2)}, v{A(tt,t,3)}")
            if t == 2:
                for i in range(4):
                    s.i(f"v_cndmask_b32 v{B+8+i}, v{B+8+i}, v{self.vT}, s[{sONE}:{sONE+1}]")
            s.lds(f"ds_write_b128 v{self.vBVW}, v[{B+4*t}:{B+4*t+3}] offset:{t*1024}", "bvw")
        s.lg0()
        self.tick(s, "kv_a")
        s.bar()
        self.tick(s, "kv_b")
        BF = self.vE
        for v in range(4):
            s.lds(f"ds_read_b128 v[{BF+4*v}:{BF+4*v+3}], v{self.vBVR} offset:{v*3072}", f"kvr{v}")
            for mt in range(3):
                r = AF + (v * 3 + mt) * 4
                off = v * 5120 + mt * 32
                s.lds(f"ds_read_b64_tr_b16 v[{r}:{r+1}], v{self.vPKR} offset:{off}", f"kvr{v}")
                s.lds(f"ds_read_b64_tr_b16 v[{r+2}:{r+3}], v{self.vPKR} offset:{off+2560}", f"kvr{v}")
        D = self.vPP
        for v in range(4):
            s.lgw(f"kvr{v}")
            for mt in range(3):
                r = AF + (v * 3 + mt) * 4
                c = "0" if v == 0 else f"v[{D+4*mt}:{D+4*mt+3}]"
                s.i(f"v_mfma_f32_16x16x32_bf16 v[{D+4*mt}:{D+4*mt+3}], v[{r}:{r+3}], v[{BF+4*v}:{BF+4*v+3}], {c}")
        self.tick(s, "kv_c")
        for mt in range(3):
            s.i(f"v_cvt_pk_bf16_f32 v{B+2*mt}, v{D+4*mt}, v{D+4*mt+1}")
            s.i(f"v_cvt_pk_bf16_f32 v{B+2*mt+1}, v{D+4*mt+2}, v{D+4*mt+3}")
            va = self.vSTW if mt < 2 else self.vSTW2
            s.lds(f"ds_write_b64 v{va}, v[{B+2*mt}:{B+2*mt+1}] offset:{32*mt}", "stw")
        s.i(f"v_cmp_gt_u32 vcc, 210, v0")
        s.lg0()
        self.tick(s, "kv_d")
        s.bar()
        self.tick(s, "kv_e")
        R = AF
        s.lds(f"ds_read_b128 v[{R}:{R+3}], v{self.vSTR}", "str")
        s.lg0()
        for i in range(4): s.i(f"v_cndmask_b32 v{R+i}, 0, v{R+i}, vcc")
        s.vm(f"buffer_store_dwordx4 v[{R}:{R+3}], v{self.vPST}, {srd(S_WS)}, 0 offen sc1", "pst")
        self.stamp(s, "kvpub")
        if self.dump == "KV": s.vm0()
        return s

    def hop1_load_groups(self, tag):
        H = self.aH
        gs = []
        g = S()
        for pq in range(1, 4): g.i(f"s_mov_b32 s{sT0+pq}, {pq*4*PS}")
        g.vm(f"buffer_load_dword v{self.vFL}, v{self.vFLG}, {srd(S_DBG)}, 0 offen sc1", tag)
        gs.append(g)
        for j in range(4):
            opt = (j == 3)
            for pq in range(4):
                g = S()
                if opt:
                    lab = f"L_h1s_{tag}_{pq}"
                    g.i(f"s_cmp_ge_u32 s{sWAVE}, 2")
                    g.i(f"s_cbranch_scc1 {lab}")
                r = H + (j * 4 + pq) * 4
                so = "0" if pq == 0 else f"s{sT0+pq}"
                g.vm(f"buffer_load_dwordx4 a[{r}:{r+3}], v{self.vH1}, {srd(S_WS)}, {so} offen offset:{j*1024} sc1", tag, opt)
                if opt: g.i(f"{lab}:")
                gs.append(g)
        return gs

    def phaseQ(self):
        s = S(); s.c("---- phase Q ----")
        woA = [x for ks in range(10) for x in self.dma_wo(ks, "woA")]
        h1 = self.hop1_load_groups("h1") if self.stop >= 7 else []
        self.bg_qe = [x for ks in range(10, 17) for x in self.dma_wo(ks, "woB")]
        main = self.gemm_resident("Q", woA, bg_start=0, waits=(0,), bg_end=11)
        main, left = weave(main, h1, every=3, start=62)
        s.extend(main)
        for g in left: s.extend(g)
        self.stamp(s, "Qgemm")
        if self.dump == "Q":
            s.extend(self.dump_regs([f"v{self.vACC+i}" for i in range(24)], "accQ"))
        return s

    def hop1(self):
        s = S(); s.c("---- hop1: gather + reduce kv partials ----")
        H = self.aH
        D = self.vAF
        t = self.vT
        s.i(f"s_mov_b32 s{sCNT}, 0")
        self.tick(s, "h1_a")
        s.vmw("h1")
        self.tick(s, "h1_b")
        s.i("L_h1_check:")
        s.i(f"s_cmp_lt_u32 s{sWAVE}, 2")
        s.i("s_cbranch_scc1 L_h1_nozero")
        for i in range(16): s.i(f"v_accvgpr_write_b32 a{H+48+i}, 0")
        s.i("s_nop 1")
        s.i("L_h1_nozero:")
        for pq in range(4):
            for j in range(4):
                r = H + (j * 4 + pq) * 4
                c = "0" if pq == 0 else f"v[{D+4*j}:{D+4*j+3}]"
                s.i(f"v_mfma_f32_16x16x32_bf16 v[{D+4*j}:{D+4*j+3}], v[{self.vSEL}:{self.vSEL+3}], a[{r}:{r+3}], {c}")
        s.i(f"v_and_b32 v{t}, 0x10101010, v{self.vFL}")
        s.i(f"v_cmp_ne_u32 vcc, 0x10101010, v{t}")
        s.i(f"s_or_b32 s{sM}, vcc_lo, vcc_hi")
        s.i(f"s_and_b32 s{sT0}, s{sGRP}, 3")
        s.i(f"s_lshl_b32 s{sT0}, s{sT0}, 3")
        s.i(f"v_lshrrev_b32 v{t+1}, s{sT0}, v{self.vFL}")
        s.i(f"v_and_b32 v{t+1}, 0xff, v{t+1}")
        s.i(f"v_cmp_ne_u32 vcc, s{sFLAGV}, v{t+1}")
        s.i(f"s_lshr_b32 s{sT1}, s{sGRP}, 2")
        s.i(f"s_mov_b32 s{sT2}, 0x55555555")
        s.i(f"s_lshl_b32 s{sT2}, s{sT2}, s{sT1}")
        s.i(f"s_or_b32 s{sT3}, vcc_lo, vcc_hi")
        s.i(f"s_and_b32 s{sT3}, s{sT3}, s{sT2}")
        s.i(f"s_cmp_eq_u32 s{sT3}, 0")
        s.i(f"s_cselect_b32 s{sFAST}, 1, 0")
        s.i(f"v_add_f32 v{t}, v{D}, v{D+1}")
        for i in range(2, 16): s.i(f"v_add_f32 v{t}, v{t}, v{D+i}")
        s.i(f"v_cmp_u_f32 vcc, v{t}, v{t}")
        s.i(f"s_or_b32 s{sM}, s{sM}, vcc_lo")
        s.i(f"s_or_b32 s{sM}, s{sM}, vcc_hi")
        s.i(f"s_cmp_eq_u32 s{sM}, 0")
        s.i("s_cbranch_scc1 L_h1_ok")
        s.i("L_h1_poll:")
        s.i(f"s_add_u32 s{sCNT}, s{sCNT}, 1")
        s.i(f"s_cmp_gt_u32 s{sCNT}, {SPIN_MAX}")
        s.i("s_cbranch_scc1 L_h1_ok")
        s.i(f"buffer_load_dword v{self.vSM}, v{self.vS1}, {srd(S_WS)}, 0 offen sc1")
        s.i("s_waitcnt vmcnt(0)")
        s.i(f"v_cmp_eq_u32 vcc, -1, v{self.vSM}")
        s.i("s_nop 1")
        s.i(f"s_or_b32 s{sT0}, vcc_lo, vcc_hi")
        s.i(f"s_cmp_lg_u32 s{sT0}, 0")
        s.i("s_cbranch_scc1 L_h1_poll")
        for g in self.hop1_load_groups("h1r"): s.extend(g)
        s.i("s_waitcnt vmcnt(0)")
        s.i("s_branch L_h1_check")
        s.i("L_h1_ok:")
        self.tick(s, "h1_c")
        s.call(lambda: setattr(self.P, "vm", [x for x in self.P.vm if x[0] not in ("h1r",)]))
        s.i("s_nop 7")
        for j in range(4):
            s.i(f"v_cvt_pk_bf16_f32 v{t+2*(j&1)}, v{D+4*j}, v{D+4*j+1}")
            s.i(f"v_cvt_pk_bf16_f32 v{t+2*(j&1)+1}, v{D+4*j+2}, v{D+4*j+3}")
            opt = (j == 3)
            if opt:
                s.i(f"s_cmp_ge_u32 s{sWAVE}, 2")
                s.i("s_cbranch_scc1 L_h1_skipw")
            s.i("s_mov_b64 exec, 0xffffffff")
            s.lds(f"ds_write_b64 v{self.vKVW}, v[{t+2*(j&1)}:{t+2*(j&1)+1}] offset:{j*1024}", "kvw")
            s.i("s_mov_b64 exec, -1")
            if opt: s.i("L_h1_skipw:")
        s.lg0()
        s.bar()
        self.stamp(s, "hop1")
        return s

    def ocomp(self):
        s = S(); s.c("---- o = phi_q kv / den ----")
        AO = 64
        for i in range(5):
            for t in range(6):
                r = AO + (t * 5 + i) * 4
                if t < 4: va, off = self.vOA, 320 * t + 16 * i
                elif t == 4: va, off = self.vOB, 16 * i
                else: va, off = self.vOC, 16 * i
                s.lds(f"ds_read_b128 a[{r}:{r+3}], v{va} offset:{off}", f"oa{i}")
        D = self.vAF
        for i in range(5):
            s.lgw(f"oa{i}")
            for t in range(6):
                r = AO + (t * 5 + i) * 4
                c = "0" if i == 0 else f"v[{D+4*t}:{D+4*t+3}]"
                s.i(f"v_mfma_f32_16x16x32_bf16 v[{D+4*t}:{D+4*t+3}], a[{r}:{r+3}], v[{self.vPHI+4*i}:{self.vPHI+4*i+3}], {c}")
        t0 = self.vT
        s.i(f"v_add_f32 v{t0}, 0x358637bd, v{D+20}")
        s.i(f"v_rcp_f32 v{t0}, v{t0}")
        for i in range(0, 20, 2): s.i(f"v_pk_mul_f32 v[{D+i}:{D+i+1}], v[{D+i}:{D+i+1}], v[{t0}:{t0+1}] op_sel_hi:[1,0]")
        O = self.vO
        for i in range(10): s.i(f"v_cvt_pk_bf16_f32 v{O+i}, v{D+2*i}, v{D+2*i+1}")
        for i in range(10): s.i(f"v_min_u32 v{O+i}, -2, v{O+i}")
        for mode in ((0, 1) if self.fast else (0,)):
            fl = "" if mode == 1 else " sc1"
            if self.fast:
                if mode == 0:
                    s.i(f"s_cmp_eq_u32 s{sFAST}, 1")
                    s.i("s_cbranch_scc1 L_ost_fast")
                else:
                    s.i("s_branch L_ost_done")
                    s.i("L_ost_fast:")
            opt = (mode == 1)
            s.vm(f"buffer_store_dwordx4 v[{O}:{O+3}], v{self.vOS1}, {srd(S_WS)}, 0 offen{fl}", "ost", opt)
            s.vm(f"buffer_store_dwordx4 v[{O+4}:{O+7}], v{self.vOS1}, {srd(S_WS)}, 0 offen offset:256{fl}", "ost", opt)
            s.vm(f"buffer_store_dwordx2 v[{O+8}:{O+9}], v{self.vOS2}, {srd(S_WS)}, 0 offen{fl}", "ost", opt)
        if self.fast: s.i("L_ost_done:")
        self.stamp(s, "opub")
        if self.dump == "O": s.vm0()
        return s

    def of_loads(self, s, tag):
        F = self.vF
        s.i(f"s_movk_i32 s{sT1}, 4096")
        s.i(f"s_movk_i32 s{sT2}, 8192")
        for k in range(10):
            for tl in range(2):
                va = self.vOF if tl == 0 else self.vOF2
                r = F + (k * 2 + tl) * 4
                so = "0" if k < 4 else f"s{sT0 + k//4}"
                s.vm(f"buffer_load_dwordx4 v[{r}:{r+3}], v{va}, {srd(S_WS)}, {so} offen offset:{(k%4)*1024} sc1", f"{tag}{k}")

    def p3(self):
        s = S(); s.c("---- P3: out = o @ wo ----")
        F = self.vF
        self.tick(s, "P3_a")
        s.vmw("woA", "woB", "woC")
        s.bar()
        self.tick(s, "P3_b")
        for k in range(10):
            for ct in range(5):
                r = (k * 5 + ct) * 4
                off = k * 5120 + 8 * ct
                s.lds(f"ds_read_b64_tr_b16 a[{r}:{r+1}], v{self.vWOA} offset:{off}", "wof")
                s.lds(f"ds_read_b64_tr_b16 a[{r+2}:{r+3}], v{self.vWOA} offset:{off+2560}", "wof")
        self.tick(s, "P3_pre")
        s.i(f"s_mov_b32 s{sCNT}, 0")
        s.i("L_h2_poll:")
        s.i(f"s_add_u32 s{sCNT}, s{sCNT}, 1")
        s.i(f"s_cmp_gt_u32 s{sCNT}, {SPIN_MAX}")
        s.i("s_cbranch_scc1 L_h2_go")
        s.i(f"buffer_load_dword v{self.vSM}, v{self.vS2}, {srd(S_WS)}, 0 offen sc1")
        s.i("s_waitcnt vmcnt(0)")
        s.i(f"v_cmp_eq_u32 vcc, -1, v{self.vSM}")
        s.i("s_nop 1")
        s.i(f"s_cmp_lg_u32 vcc_lo, 0")
        s.i("s_cbranch_scc1 L_h2_poll")
        s.i("L_h2_go:")
        s.call(lambda: setattr(self.P, "vm", []))
        self.tick(s, "P3_seen")
        self.of_loads(s, "of")
        s.lg0()
        ACC = self.vACC
        bad = self.vBAD
        for k in range(10):
            s.vmw(f"of{k}")
            m = S()
            for tl in range(2):
                for ct in range(5):
                    r = (k * 5 + ct) * 4
                    d = ACC + (tl * 5 + ct) * 4
                    f = F + (k * 2 + tl) * 4
                    c = "0" if k == 0 else f"v[{d}:{d+3}]"
                    m.i(f"v_mfma_f32_16x16x32_bf16 v[{d}:{d+3}], a[{r}:{r+3}], v[{f}:{f+3}], {c}")
            f = F + k * 8
            chk = []
            if k == 0:
                chk.append(S().i(f"v_max3_u32 v{bad}, v{f}, v{f+1}, v{f+2}"))
                chk.append(S().i(f"v_max3_u32 v{bad}, v{bad}, v{f+3}, v{f+4}"))
                chk.append(S().i(f"v_max3_u32 v{bad}, v{bad}, v{f+5}, v{f+6}"))
                chk.append(S().i(f"v_max_u32 v{bad}, v{bad}, v{f+7}"))
            else:
                for i in range(0, 8, 2): chk.append(S().i(f"v_max3_u32 v{bad}, v{bad}, v{f+i}, v{f+i+1}"))
            m, left = weave(m, chk, every=2)
            s.extend(m)
        s.i(f"v_cmp_eq_u32 vcc, -1, v{bad}")
        s.i("s_nop 1")
        s.i(f"s_or_b32 s{sM}, vcc_lo, vcc_hi")
        s.i(f"s_cmp_eq_u32 s{sM}, 0")
        s.i("s_cbranch_scc1 L_h2_ok")
        s.i(f"s_cmp_le_u32 s{sCNT}, {SPIN_MAX}")
        s.i("s_cbranch_scc1 L_h2_poll")
        s.i("L_h2_ok:")
        self.stamp(s, "gemm3")
        for ct in range(5):
            d = ACC + (5 + ct) * 4
            s.lds(f"ds_write_b128 v{self.vEXW}, v[{d}:{d+3}] offset:{R0 + ct*1024}", "exw")
        s.lg0()
        s.bar()
        X = 104
        for ct in range(5):
            s.lds(f"ds_read_b128 v[{X+4*ct}:{X+4*ct+3}], v{self.vEXR} offset:{R0 + ct*1024}", "exr")
        s.lg0()
        for i in range(0, 20, 2): s.i(f"v_pk_add_f32 v[{ACC+i}:{ACC+i+1}], v[{ACC+i}:{ACC+i+1}], v[{X+i}:{X+i+1}]")
        O = self.vO
        for i in range(10): s.i(f"v_cvt_pk_bf16_f32 v{O+i}, v{ACC+2*i}, v{ACC+2*i+1}")
        s.vm(f"buffer_store_dwordx4 v[{O}:{O+3}], v{self.vOUT}, {srd(S_OUT)}, 0 offen", "out")
        s.vm(f"buffer_store_dwordx4 v[{O+4}:{O+7}], v{self.vOUT}, {srd(S_OUT)}, 0 offen offset:16", "out")
        s.vm(f"buffer_store_dwordx2 v[{O+8}:{O+9}], v{self.vOUT}, {srd(S_OUT)}, 0 offen offset:32", "out")
        self.stamp(s, "out")
        return s

    def finish(self):
        P = self.P
        if self.profile:
            P.vm_drain()
            ins = "s_memtime" if self.ticks is not None else "s_memrealtime"
            P(f"{ins} s[100:101]"); self.stampnames.append("end"); nlast = self.nstamp; self.nstamp += 1
            P("s_waitcnt lgkmcnt(0)")
            P(f"s_lshl_b32 s{sT0}, s2, 2")
            P(f"s_add_u32 s{sT0}, s{sT0}, s{sWAVE}")
            P(f"s_lshl_b32 s{sT0}, s{sT0}, 7")
            P(f"s_add_u32 s{sT0}, s{sT0}, {STAMPS}")
            P("v_mov_b32 v2, 0")
            P("s_mov_b64 exec, 1")
            for i in range(16):
                if i < self.nstamp:
                    r = 100 if i == nlast else stamp_reg(i)
                    P(f"v_mov_b32 v4, s{r}")
                    P(f"v_mov_b32 v5, s{r+1}")
                else:
                    P("v_mov_b32 v4, 0"); P("v_mov_b32 v5, 0")
                P(f"buffer_store_dwordx2 v[4:5], v2, {srd(S_WS)}, s{sT0} offen offset:{8*i}")
                P("s_nop 1")
            P("s_waitcnt vmcnt(0)")
        P("L_end:")
        P("s_endpgm")

HEADER = f"""; hedgehog linear attention: fused persistent kernel (K/V/Q projections, feature maps, kv reduction, output projection)
; @launch grid=(256,1,1) block=(256,1,1) lds={LDS_SIZE}
.amdgcn_target "amdgcn-amd-amdhsa--gfx950"
.text
.globl {NAME}_kernel
.p2align 8
.type {NAME}_kernel,@function
{NAME}_kernel:
"""
FOOTER = f"""
.section .rodata,"a"
.p2align 6
.amdhsa_kernel {NAME}_kernel
  .amdhsa_next_free_vgpr 512
  .amdhsa_next_free_sgpr 102
  .amdhsa_accum_offset 256
  .amdhsa_group_segment_fixed_size 0
  .amdhsa_kernarg_size 56
  .amdhsa_user_sgpr_count 2
  .amdhsa_user_sgpr_kernarg_segment_ptr 1
  .amdhsa_system_sgpr_workgroup_id_x 1
  .amdhsa_float_denorm_mode_32 3
  .amdhsa_float_denorm_mode_16_64 3
.end_amdhsa_kernel
"""

if __name__ == "__main__":
    ap = argparse.ArgumentParser()
    ap.add_argument("-o", default="k.s")
    ap.add_argument("--stop", type=int, default=99)
    ap.add_argument("--profile", action="store_true")
    ap.add_argument("--dump", default=None)
    ap.add_argument("--norot", action="store_true")
    ap.add_argument("--nofast", action="store_true")
    ap.add_argument("--ticks", default=None)
    ap.add_argument("--opt", action="append", default=[])
    a = ap.parse_args()
    opts = {}
    for o in a.opt:
        k, v = o.split("="); opts[k] = int(v)
    dbg = a.profile or a.dump
    g = Gen(stop=a.stop, profile=a.profile, dump=a.dump, norot=a.norot, ticks=a.ticks.split(',') if a.ticks else None,
            ws_size=0x4000000 if dbg else 0x400000, fast=not a.nofast, opts=opts)
    P = g.build()
    body, nn = P.render()
    open(a.o, "w").write(HEADER + body + FOOTER)
    print("nops inserted:", nn, "dump info:", g.dumpinfo, "stamps:", ",".join(g.stampnames))
```

```python
import sys, argparse
from asmlib import Prog
from asmlib2 import S, emit, weave, weave_frac, is_mfma

NAME = "standalone__linear_kernel_hedgehog__prompt"

R0 = 0
R1 = 51200
XR = 102400
PHI = 102400
WO = 51200
WP = 153600
ZR = WP + 2048
KVT = 157696
BV = 122880
DUM = 161792
LDS_SIZE = 163840

PART = 0
PS = 3584
OBUF = 0x100000
DBG0 = 0x400000
STAMPS = 0x3E00000
OOB = 0x7f000000
FLAG = 0xF0000
EPOCH = 0xF8000
FLAG2 = 0xF1000

S_X, S_WK, S_WV, S_WQ, S_PHI, S_WO, S_OUT, S_DBG, S_WS = 4, 8, 12, 16, 20, 24, 28, 32, 36
sWAVE, sTB, sPJ, sROT, sTB3, sCB, sGRP = 40, 41, 42, 43, 44, 45, 46
sFAST = 3
sT0, sT1, sT2, sT3, sT4, sT5 = 48, 49, 50, 51, 52, 53
sXW = 54; sL2E = 55; sCNT = 56; sFLAGV = 57; sTAG = 62; sEPN = 61
sM = 58; sM2 = 96; sONE = 0
sKA = 84
sXO = 64
sWOFS = 74
sW1280 = 47
sSO = 63
NSTAMP = 8
def stamp_reg(i): return 98 if i == 0 else 84 + 2 * (i - 1)
SPIN_MAX = 20000

def srd(s): return f"s[{s}:{s+3}]"

class Gen:
    vLANE = 1
    vXD = 2
    vWD = 6
    vWOD = 8
    vBVW, vBVR, vSTW, vSTW2, vSTR = 10, 11, 12, 13, 14
    vXA0, vXA1 = 16, 17
    vP0, vP2, vPV, vP2V = 18, 19, 20, 21
    vG, vN = 22, 23
    vPKW, vPKR, vDW, vRED, vPST, vH1, vFLG, vKVW = 24, 25, 26, 27, 28, 29, 30, 31
    vSEL = 32
    vOA, vOB, vOC, vOS1, vOS2, vWOA, vOF, vOF2, vEXW, vEXR, vOUT, vS1, vS2 = 36, 37, 38, 39, 40, 41, 42, 43, 44, 45, 46, 47, 48
    vFL = 52
    vSM = 50
    vBAD = 51
    vT = 56
    vF2W, vF2V = 240, 241
    vTCH, vTCD = 242, 243
    vSENT = 244
    vACC = 64
    vAF = 88
    vB1 = 136
    vPP = 148
    vE = 168
    vPHI = 208
    vF = 136
    vO = 228
    aX = 0
    aF = 160
    aH = 0

    def __init__(self, stop=99, profile=False, dump=None, norot=False, ticks=None, ws_size=0x400000, fast=True, opts=None):
        self.P = Prog()
        self.stop = stop; self.profile = profile; self.dump = dump; self.norot = norot; self.ticks = ticks
        self.nstamp = 0; self.dumpinfo = []; self.dump_base = DBG0; self.stampnames = []
        self.ws_size = ws_size; self.fast = fast
        self.opts = opts or {}

    def tick_op(self, name):
        if not self.profile: return []
        if self.ticks is None:
            if not (name.startswith("S_") or name == "start"): return []
        elif not any(name.startswith(t) for t in self.ticks): return []
        if self.nstamp >= NSTAMP - 1: return []
        ins = "s_memtime" if self.ticks is not None else "s_memrealtime"
        r = stamp_reg(self.nstamp)
        ops = [("i", f"{ins} s[{r}:{r+1}]")]
        self.stampnames.append(name); self.nstamp += 1
        return ops
    def tick(self, s, name):
        s.append(("call", lambda n=name: emit(self.P, self.tick_op(n))))
    def stamp(self, s, name):
        self.tick(s, "S_" + name)

    def dump_regs(self, regs, name):
        s = S()
        n = len(regs); stride = n * 256
        base = self.dump_base
        self.dumpinfo.append((name, base, n))
        self.dump_base += 1024 * stride
        assert self.dump_base <= STAMPS, "dump overflow"
        s.lg0()
        s.i("s_nop 7\ns_nop 7")
        s.i(f"s_lshl_b32 s{sT0}, s2, 2")
        s.i(f"s_add_u32 s{sT0}, s{sT0}, s{sWAVE}")
        s.i(f"s_mul_i32 s{sT0}, s{sT0}, {stride}")
        s.i(f"s_add_u32 s{sT0}, s{sT0}, {base}")
        s.i(f"v_lshlrev_b32 v255, 2, v{self.vLANE}")
        for i, r in enumerate(regs):
            if r.startswith("a"):
                s.i(f"v_accvgpr_read_b32 v254, {r}"); src = "v254"
            else: src = r
            s.i(f"s_add_u32 s{sT1}, s{sT0}, {i*256}")
            s.vm(f"buffer_store_dword {src}, v255, {srd(S_WS)}, s{sT1} offen", "dump")
            s.i("s_nop 1")
        s.vm0()
        return s

    def build(self):
        steps = [self.prologue, self.phaseK, lambda: self.epiFeat("K"), self.phaseV, self.kv, self.phaseQ,
                 lambda: self.epiFeat("Q"), self.hop1, self.ocomp, self.p3]
        for i, st in enumerate(steps):
            if self.stop >= i: emit(self.P, st())
        self.finish()
        return self.P

    def xfrag(self, tt, ks):
        b = self.aX + (ks * 2 + tt) * 4
        return f"a[{b}:{b+3}]"

    def dma_x(self, lb):
        gs = []
        slot = (lb % 3) * 4096
        for tt in range(2):
            for q in range(2):
                g = S()
                g.i(f"s_add_u32 m0, s{sXW}, {slot + tt*2048 + q*1024}")
                g.vm(f"buffer_load_dwordx4 v{self.vXD+tt*2+q}, {srd(S_X)}, s{sXO+lb} offen lds", f"x{lb}")
                gs.append(g)
        return gs
    def dma_w(self, part, lb):
        base = {"K": R0, "V": R1, "Q": R0}[part]
        sr = {"K": S_WK, "V": S_WV, "Q": S_WQ}[part]
        if self.opts.get("nodma") and part != "K": return []
        A = S(); B = S()
        A.i(f"s_add_u32 m0, s{sW1280}, {base + lb*5120}")
        A.vm(f"buffer_load_dwordx4 v{self.vWD}, {srd(sr)}, s{sWOFS+lb} offen lds", f"W{part}{lb}")
        B.i(f"s_add_u32 m0, s{sW1280}, {base + lb*5120 + 1024}")
        B.i("s_mov_b64 exec, 0xffff")
        B.vm(f"buffer_load_dwordx4 v{self.vWD+1}, {srd(sr)}, s{sWOFS+lb} offen lds", f"W{part}{lb}")
        B.i("s_mov_b64 exec, -1")
        return [A, B]
    def dma_wo(self, ks, tag):
        if self.opts.get("nodma"): return []
        A = S(); B = S()
        A.i(f"s_mov_b32 s{sSO}, {ks*40960}")
        A.i(f"s_add_u32 m0, s{sW1280}, {WO + ks*5120}")
        A.vm(f"buffer_load_dwordx4 v{self.vWOD}, {srd(S_WO)}, s{sSO} offen lds", tag)
        B.i(f"s_add_u32 m0, s{sW1280}, {WO + ks*5120 + 1024}")
        B.i("s_mov_b64 exec, 0xffff")
        B.vm(f"buffer_load_dwordx4 v{self.vWOD+1}, {srd(S_WO)}, s{sSO} offen lds", tag)
        B.i("s_mov_b64 exec, -1")
        return [A, B]

    def prologue(self):
        s = S()
        s.i("s_cmp_ge_u32 s2, 256")
        s.i("s_cbranch_scc1 L_end")
        if self.profile:
            ins = "s_memtime" if self.ticks is not None else "s_memrealtime"
            s.i(f"{ins} s[98:99]"); self.stampnames.append("start"); self.nstamp = 1
        s.i(f"s_load_dwordx8 s[{sKA}:{sKA+7}], s[0:1], 0")
        s.i(f"s_load_dwordx4 s[{sKA+8}:{sKA+11}], s[0:1], 32")
        s.i(f"s_load_dwordx2 s[{sKA+12}:{sKA+13}], s[0:1], 48")
        L = self.vLANE
        s.i(f"v_and_b32 v{L}, 63, v0")
        s.i(f"v_lshrrev_b32 v{self.vT}, 6, v0")
        s.i(f"v_readfirstlane_b32 s{sWAVE}, v{self.vT}")
        s.i(f"s_and_b32 s{sGRP}, s2, 7")
        s.i(f"s_lshr_b32 s{sT1}, s2, 3")
        if self.opts.get("map", 0) == 0:
            s.i(f"s_lshr_b32 s{sT2}, s{sT1}, 4")
            s.i(f"s_lshl_b32 s{sTB}, s{sGRP}, 1")
            s.i(f"s_add_u32 s{sTB}, s{sTB}, s{sT2}")
            s.i(f"s_and_b32 s{sPJ}, s{sT1}, 15")
        else:
            s.i(f"s_lshr_b32 s{sT2}, s{sT1}, 3")
            s.i(f"s_lshr_b32 s{sTB}, s{sGRP}, 1")
            s.i(f"s_lshl_b32 s{sTB}, s{sTB}, 2")
            s.i(f"s_add_u32 s{sTB}, s{sTB}, s{sT2}")
            s.i(f"s_and_b32 s{sPJ}, s{sGRP}, 1")
            s.i(f"s_lshl_b32 s{sPJ}, s{sPJ}, 3")
            s.i(f"s_and_b32 s{sT3}, s{sT1}, 7")
            s.i(f"s_add_u32 s{sPJ}, s{sPJ}, s{sT3}")
        s.i(f"s_and_b32 s{sCB}, s{sT1}, 7")
        s.i(f"s_lshr_b32 s{sT3}, s{sT1}, 3")
        s.i(f"s_lshl_b32 s{sTB3}, s{sGRP}, 2")
        s.i(f"s_add_u32 s{sTB3}, s{sTB3}, s{sT3}")
        if self.opts.get("map", 0) == 0:
            m = self.opts.get("rotm", 3)
            s.i(f"s_mul_i32 s{sROT}, s{sPJ}, {m}")
            s.i(f"s_mul_i32 s{sT2}, s{sT2}, 5")
            s.i(f"s_add_u32 s{sROT}, s{sROT}, s{sT2}")
            s.i(f"s_mul_i32 s{sT1}, s{sROT}, 52429")
            s.i(f"s_lshr_b32 s{sT1}, s{sT1}, 19")
            s.i(f"s_mul_i32 s{sT1}, s{sT1}, 10")
            s.i(f"s_sub_u32 s{sROT}, s{sROT}, s{sT1}")
        else:
            s.i(f"s_mul_i32 s{sROT}, s{sCB}, 5")
            s.i(f"s_mul_i32 s{sT2}, s{sT2}, 10")
            s.i(f"s_add_u32 s{sROT}, s{sROT}, s{sT2}")
            s.i(f"s_lshr_b32 s{sROT}, s{sROT}, 2")
        s.i(f"s_cmp_ge_u32 s{sROT}, 10")
        s.i(f"s_cselect_b32 s{sT1}, 10, 0")
        s.i(f"s_sub_u32 s{sROT}, s{sROT}, s{sT1}")
        if self.norot: s.i(f"s_mov_b32 s{sROT}, 0")
        t0, t1, t2, t3 = self.vT, self.vT + 1, self.vT + 2, self.vT + 3
        XD = self.vXD
        s.i(f"v_lshrrev_b32 v{t0}, 3, v{L}")
        s.i(f"v_and_b32 v{t1}, 7, v{L}")
        s.i(f"v_lshrrev_b32 v{t2}, 1, v{t0}")
        s.i(f"v_xor_b32 v{XD}, v{t1}, v{t2}")
        s.i(f"v_xor_b32 v{XD+1}, 4, v{XD}")
        s.i(f"v_lshlrev_b32 v{XD}, 4, v{XD}")
        s.i(f"v_lshlrev_b32 v{XD+1}, 4, v{XD+1}")
        s.i(f"s_movk_i32 s{sT2}, 1280")
        s.i(f"v_mad_u32_u24 v{XD}, v{t0}, s{sT2}, v{XD}")
        s.i(f"v_add_u32 v{t0}, 8, v{t0}")
        s.i(f"v_mad_u32_u24 v{XD+1}, v{t0}, s{sT2}, v{XD+1}")
        s.i(f"v_add_u32 v{XD+2}, 20480, v{XD}")
        s.i(f"v_add_u32 v{XD+3}, 20480, v{XD+1}")
        s.i(f"s_lshl_b32 s{sT0}, s{sTB}, 2")
        s.i(f"s_add_u32 s{sT0}, s{sT0}, s{sWAVE}")
        s.i(f"s_mul_i32 s{sT4}, s{sT0}, {32*1280}")
        s.i(f"s_mul_i32 s{sXW}, s{sWAVE}, 12288")
        s.i(f"s_add_u32 s{sXW}, s{sXW}, {XR}")
        s.i(f"s_mul_i32 s{sW1280}, s{sWAVE}, 1280")
        s.i(f"s_mul_i32 s{sT5}, s{sPJ}, 80")
        s.i(f"s_lshl_b32 s{sXO}, s{sROT}, 7")
        s.i(f"s_mul_i32 s{sWOFS}, s{sROT}, {64*3840}")
        s.i(f"s_mul_i32 s{sT0}, s{sWAVE}, 80")
        s.i(f"s_movk_i32 s{sT2}, 3840")
        s.i(f"s_mov_b32 s{sT3}, 52429")
        for e in range(2):
            s.i(f"v_add_u32 v{t0}, s{sT0}, v{L}")
            if e: s.i(f"v_add_u32 v{t0}, 64, v{t0}")
            s.i(f"v_mul_u32_u24 v{t1}, s{sT3}, v{t0}")
            s.i(f"v_lshrrev_b32 v{t1}, 18, v{t1}")
            s.i(f"v_mul_u32_u24 v{t2}, 5, v{t1}")
            s.i(f"v_sub_u32 v{t0}, v{t0}, v{t2}")
            s.i(f"v_and_b32 v{t2}, 0x28, v{t1}")
            s.i(f"v_and_b32 v{t3}, 1, v{t1}")
            s.i(f"v_lshl_or_b32 v{t2}, v{t3}, 4, v{t2}")
            s.i(f"v_bfe_u32 v{t3}, v{t1}, 4, 1")
            s.i(f"v_lshl_or_b32 v{t2}, v{t3}, 2, v{t2}")
            s.i(f"v_bfe_u32 v{t3}, v{t1}, 1, 2")
            s.i(f"v_or_b32 v{t2}, v{t2}, v{t3}")
            s.i(f"v_lshlrev_b32 v{t0}, 4, v{t0}")
            s.i(f"v_mad_u32_u24 v{self.vWD+e}, v{t2}, s{sT2}, v{t0}")
        s.i("s_waitcnt lgkmcnt(0)")
        def mk(sd, p, size, off=None):
            if off is None:
                s.i(f"s_mov_b32 s{sd}, s{p}")
                s.i(f"s_and_b32 s{sd+1}, s{p+1}, 0xffff")
                s.i(f"s_mov_b32 s{sd+2}, {size}")
            else:
                reg, const = off
                if const: s.i(f"s_add_u32 s{sT0}, s{reg}, {const}"); r = sT0
                else: r = reg
                s.i(f"s_add_u32 s{sd}, s{p}, s{r}")
                s.i(f"s_addc_u32 s{sd+1}, s{p+1}, 0")
                s.i(f"s_and_b32 s{sd+1}, s{sd+1}, 0xffff")
                s.i(f"s_sub_u32 s{sd+2}, {size}, s{r}")
            s.i(f"s_mov_b32 s{sd+3}, 0x20000")
        s.i(f"s_load_dword s{sEPN}, s[{sKA+12}:{sKA+13}], {EPOCH}")
        mk(S_X, sKA + 0, 2048 * 1280, (sT4, 0))
        for g in self.dma_x(0): s.extend(g)
        mk(S_WK, sKA + 2, 640 * 3840, (sT5, 1280))
        for g in self.dma_w("K", 0): s.extend(g)
        self.tick(s, "P_a")
        for lb in range(1, 10):
            s.i(f"s_add_u32 s{sXO+lb}, s{sXO+lb-1}, 128")
            s.i(f"s_add_u32 s{sWOFS+lb}, s{sWOFS+lb-1}, {64*3840}")
            s.i(f"s_cmp_eq_u32 s{sROT}, {10-lb}")
            s.i(f"s_cselect_b32 s{sXO+lb}, 0, s{sXO+lb}")
            s.i(f"s_cselect_b32 s{sWOFS+lb}, 0, s{sWOFS+lb}")
            if lb == 1:
                for g in self.dma_x(1)[:2]: s.extend(g)
        mk(S_WV, sKA + 2, 640 * 3840, (sT5, 2560))
        mk(S_WQ, sKA + 2, 640 * 3840, (sT5, 0))
        mk(S_PHI, sKA + 4, 25600)
        s.i(f"s_mul_i32 s{sT3}, s{sCB}, 160")
        mk(S_WO, sKA + 6, 640 * 1280, (sT3, 0))
        mk(S_OUT, sKA + 8, 2048 * 1280)
        mk(S_DBG, sKA + 10, 256)
        mk(S_WS, sKA + 12, self.ws_size)
        su = S()
        self.setup_basic(su)
        self.setup2(su)
        self.setup3(su)
        self.wo_offsets(su)
        self.prefill_addr(su)
        if self.opts.get("touch", 1): self.touch_addr(su)
        pf = S()
        self.phi_stage(pf)
        self.prefill(pf)
        dm = self.dma_x(1)[2:] + self.dma_w("K", 1) + self.dma_x(2) + self.dma_w("K", 2)
        su = weave_frac(su, dm, lo=0.15, hi=1.0)
        s.extend(su)
        self.tick(s, "P_b")
        s.extend(pf)
        self.stamp(s, "prologue")
        return s

    def setup_basic(self, s):
        L = self.vLANE
        a, b_, c_, d_ = self.vT, self.vT + 1, self.vT + 2, self.vT + 3
        s.i(f"v_lshrrev_b32 v{self.vG}, 4, v{L}")
        s.i(f"v_and_b32 v{self.vN}, 15, v{L}")
        s.i(f"v_lshrrev_b32 v{a}, 1, v{self.vN}")
        s.i(f"v_xor_b32 v{a}, v{a}, v{self.vG}")
        s.i(f"v_lshlrev_b32 v{a}, 4, v{a}")
        s.i(f"v_lshl_add_u32 v{a}, v{self.vN}, 7, v{a}")
        s.i(f"v_add_u32 v{self.vXA0}, s{sXW}, v{a}")
        s.i(f"v_xor_b32 v{a}, 64, v{a}")
        s.i(f"v_add_u32 v{self.vXA1}, s{sXW}, v{a}")
        s.i(f"v_bfe_u32 v{a}, v{L}, 2, 2")
        s.i(f"v_and_b32 v{b_}, 1, v{self.vG}")
        s.i(f"v_lshl_add_u32 v{a}, v{b_}, 2, v{a}")
        s.i(f"v_lshrrev_b32 v{b_}, 1, v{self.vG}")
        s.i(f"v_lshl_add_u32 v{a}, v{a}, 1, v{b_}")
        s.i(f"v_mul_u32_u24 v{a}, 80, v{a}")
        s.i(f"v_and_b32 v{b_}, 3, v{L}")
        s.i(f"v_and_b32 v{c_}, 1, v{b_}")
        s.i(f"v_lshrrev_b32 v{d_}, 1, v{b_}")
        s.i(f"v_mul_u32_u24 v{d_}, 5, v{d_}")
        s.i(f"v_lshl_add_u32 v{d_}, v{c_}, 1, v{d_}")
        s.i(f"v_lshl_add_u32 v{self.vP0}, v{d_}, 3, v{a}")
        s.i(f"v_xor_b32 v{c_}, 1, v{c_}")
        s.i(f"v_lshl_add_u32 v{self.vP2}, v{c_}, 5, v{self.vP0}")
        s.i(f"v_lshl_add_u32 v{self.vPV}, v{b_}, 3, v{a}")
        s.i(f"v_add_u32 v{self.vPV}, {R1}, v{self.vPV}")
        s.i(f"v_add_u32 v{self.vP2V}, {R1}, v{self.vP2}")
        s.i(f"s_mov_b32 s{sL2E}, 0x3fb8aa3b")
        s.i(f"s_getreg_b32 s{sFLAGV}, hwreg(HW_REG_XCC_ID, 0, 4)")
        s.i("s_waitcnt lgkmcnt(0)")
        s.i(f"s_mul_i32 s{sEPN}, s{sEPN}, 0x9e3779b1")
        s.i(f"s_add_u32 s{sEPN}, s{sEPN}, 0x7f4a7c15")
        s.i(f"s_and_b32 s{sTAG}, s{sEPN}, 0xfffffff0")
        s.i(f"s_or_b32 s{sFLAGV}, s{sFLAGV}, s{sTAG}")

    def phi_stage(self, s):
        a = self.vT
        s.i(f"v_lshlrev_b32 v{a}, 4, v{self.vLANE}")
        s.i(f"s_mul_i32 s{sT0}, s{sPJ}, 1600")
        s.i(f"s_lshl_b32 s{sT1}, s{sWAVE}, 10")
        s.i(f"s_add_u32 s{sT0}, s{sT0}, s{sT1}")
        s.i(f"s_cmp_ge_u32 s{sWAVE}, 2")
        s.i(f"s_cselect_b32 s{sT0}, 0x100000, s{sT0}")
        s.i(f"s_add_u32 m0, s{sT1}, {WP}")
        s.i(f"v_add_u32 v{a}, s{sT0}, v{a}")
        s.vm(f"buffer_load_dwordx4 v{a}, {srd(S_PHI)}, 0 offen lds", "phi")

    def prefill_addr(self, s):
        a, b_, c_ = self.vT, self.vT + 1, self.vT + 2
        s.i(f"s_lshl_b32 s{sT0}, s{sPJ}, 4")
        s.i(f"s_add_u32 s{sT0}, s{sT0}, s{sTB}")
        s.i(f"s_mul_i32 s{sT0}, s{sT0}, {PS}")
        s.i(f"v_lshlrev_b32 v{a}, 4, v0")
        s.i(f"v_add_u32 v{self.vPST}, s{sT0}, v{a}")
        s.i(f"v_mov_b32 v{b_}, {OOB}")
        s.i(f"v_cmp_gt_u32 vcc, 224, v0")
        s.i(f"v_cndmask_b32 v{self.vPST}, v{b_}, v{self.vPST}, vcc")
        for i in range(4): s.i(f"v_mov_b32 v{self.vSENT+i}, -1")
    def touch_addr(self, s):
        a, b_, c_ = self.vT, self.vT + 1, self.vT + 2
        s.i(f"s_mul_i32 s{sT0}, s{sWAVE}, 20")
        s.i(f"v_add_u32 v{a}, s{sT0}, v{self.vLANE}")
        s.i(f"s_movk_i32 s{sT1}, 6554")
        s.i(f"v_mul_u32_u24 v{b_}, s{sT1}, v{a}")
        s.i(f"v_lshrrev_b32 v{b_}, 16, v{b_}")
        s.i(f"v_mul_u32_u24 v{c_}, 10, v{b_}")
        s.i(f"v_sub_u32 v{c_}, v{a}, v{c_}")
        s.i(f"v_lshlrev_b32 v{c_}, 7, v{c_}")
        s.i(f"s_movk_i32 s{sT2}, 0x5000")
        s.i(f"v_mad_u32_u24 v{b_}, v{b_}, s{sT2}, v{c_}")
        s.i(f"s_lshl_b32 s{sT0}, s{sTB}, 3")
        s.i(f"s_mul_i32 s{sT0}, s{sT0}, 20480")
        s.i(f"s_mul_i32 s{sT1}, s{sPJ}, 1280")
        s.i(f"s_add_u32 s{sT0}, s{sT0}, s{sT1}")
        s.i(f"s_add_u32 s{sT0}, s{sT0}, {OBUF}")
        s.i(f"v_add_u32 v{b_}, s{sT0}, v{b_}")
        s.i(f"v_mov_b32 v{c_}, {OOB}")
        s.i(f"v_cmp_gt_u32 vcc, 20, v{self.vLANE}")
        s.i(f"v_cndmask_b32 v{self.vTCH}, v{c_}, v{b_}, vcc")
    def prefill_groups(self):
        s0 = self.vSENT
        gs = [S().vm(f"buffer_store_dwordx4 v[{s0}:{s0+3}], v{self.vPST}, {srd(S_WS)}, 0 offen sc1", "pf")]
        return gs
    def prefill(self, s):
        for g in self.prefill_groups(): s.extend(g)

    def setup2(self, s):
        L = self.vLANE
        a, b_, c_, d_, e_, f_ = [self.vT + i for i in range(6)]
        s.i(f"s_mul_i32 s{sT3}, s{sWAVE}, 5120")
        s.i(f"s_add_u32 s{sT3}, s{sT3}, {PHI}")
        s.i(f"v_and_b32 v{a}, 1, v{self.vG}")
        s.i(f"v_lshl_add_u32 v{a}, v{a}, 4, v{self.vN}")
        s.i(f"v_mul_u32_u24 v{a}, 160, v{a}")
        s.i(f"v_lshrrev_b32 v{b_}, 1, v{self.vG}")
        s.i(f"v_mul_u32_u24 v{b_}, 80, v{b_}")
        s.i(f"v_add3_u32 v{self.vPKW}, v{a}, v{b_}, s{sT3}")
        s.i(f"s_lshr_b32 s{sT2}, s{sWAVE}, 1")
        s.i(f"s_mul_i32 s{sT3}, s{sT2}, 80")
        s.i(f"s_add_u32 s{sT3}, s{sT3}, {PHI}")
        s.i(f"v_bfe_u32 v{a}, v{L}, 2, 2")
        s.i(f"v_lshl_add_u32 v{a}, v{self.vG}, 2, v{a}")
        s.i(f"v_mul_u32_u24 v{a}, 160, v{a}")
        s.i(f"v_and_b32 v{b_}, 3, v{L}")
        s.i(f"v_lshl_add_u32 v{a}, v{b_}, 3, v{a}")
        s.i(f"v_add_u32 v{self.vPKR}, s{sT3}, v{a}")
        s.i(f"v_lshlrev_b32 v{a}, 4, v{L}")
        s.i(f"s_mul_i32 s{sT3}, s{sWAVE}, 3072")
        s.i(f"s_add_u32 s{sT3}, s{sT3}, {BV}")
        s.i(f"v_add_u32 v{self.vBVW}, s{sT3}, v{a}")
        s.i(f"s_and_b32 s{sT1}, s{sWAVE}, 1")
        s.i(f"s_cmp_eq_u32 s{sT1}, 1")
        s.i(f"s_cselect_b32 s{sT3}, 2, s{sT2}")
        s.i(f"s_lshl_b32 s{sT3}, s{sT3}, 10")
        s.i(f"s_add_u32 s{sT3}, s{sT3}, {BV}")
        s.i(f"v_add_u32 v{self.vBVR}, s{sT3}, v{a}")
        s.i(f"v_and_b32 v{b_}, 3, v{self.vN}")
        s.i(f"v_add_u32 v{b_}, 16, v{b_}")
        s.i(f"v_cmp_eq_u32 vcc, 4, v{self.vN}")
        s.i(f"v_cndmask_b32 v{b_}, v{b_}, 20, vcc")
        s.i(f"s_mov_b64 s[{sM}:{sM+1}], vcc")
        s.i(f"v_lshrrev_b32 v{c_}, 2, v{self.vN}")
        s.i(f"s_lshl_b32 s{sT3}, s{sT2}, 1")
        s.i(f"v_cmp_eq_u32 vcc, s{sT3}, v{c_}")
        s.i(f"s_or_b64 s[{sM}:{sM+1}], s[{sM}:{sM+1}], vcc")
        s.i(f"s_cmp_eq_u32 s{sT1}, 1")
        s.i(f"s_cselect_b64 s[{sM}:{sM+1}], s[{sM}:{sM+1}], -1")
        s.i(f"s_cselect_b32 s{sT4}, 1, 0")
        s.i(f"v_cmp_eq_u32 vcc, 1, s{sT4}")
        s.i(f"v_cndmask_b32 v{b_}, v{self.vN}, v{b_}, vcc")
        s.i(f"s_mul_i32 s{sT3}, s{sT2}, 21")
        s.i(f"v_add_u32 v{b_}, s{sT3}, v{b_}")
        s.i(f"v_mul_u32_u24 v{b_}, 80, v{b_}")
        s.i(f"v_lshl_add_u32 v{b_}, v{self.vG}, 3, v{b_}")
        s.i(f"v_add_u32 v{b_}, {KVT}, v{b_}")
        s.i(f"v_lshlrev_b32 v{c_}, 3, v{L}")
        s.i(f"v_add_u32 v{c_}, {DUM}, v{c_}")
        s.i(f"v_cndmask_b32 v{self.vSTW}, v{c_}, v{b_}, s[{sM}:{sM+1}]")
        s.i(f"v_cmp_gt_u32 vcc, 2, v{self.vG}")
        s.i(f"v_cndmask_b32 v{self.vSTW2}, v{c_}, v{self.vSTW}, vcc")
        s.i(f"v_lshlrev_b32 v{a}, 4, v0")
        s.i(f"v_add_u32 v{self.vSTR}, {KVT}, v{a}")
        s.i(f"v_mov_b32 v{b_}, {DUM}")
        s.i(f"v_cmp_gt_u32 vcc, 224, v0")
        s.i(f"v_cndmask_b32 v{self.vSTR}, v{b_}, v{self.vSTR}, vcc")
        s.i(f"s_mul_i32 s{sT0}, s{sPJ}, {16*PS}")
        s.i(f"s_lshl_b32 s{sT1}, s{sWAVE}, 8")
        s.i(f"s_add_u32 s{sT2}, s{sT0}, s{sT1}")
        s.i(f"v_mul_u32_u24 v{a}, {PS}, v{self.vG}")
        s.i(f"v_lshl_add_u32 v{a}, v{self.vN}, 4, v{a}")
        s.i(f"v_add_u32 v{self.vH1}, s{sT2}, v{a}")
        s.i(f"v_lshrrev_b32 v{a}, 2, v{L}")
        s.i(f"v_mul_u32_u24 v{a}, {PS}, v{a}")
        s.i(f"v_and_b32 v{b_}, 3, v{L}")
        s.i(f"v_lshl_add_u32 v{a}, v{b_}, 10, v{a}")
        s.i(f"v_add_u32 v{self.vS1}, s{sT0}, v{a}")
        s.i(f"v_and_b32 v{a}, 1, v{self.vN}")
        s.i(f"v_mov_b32 v{b_}, 0x3f80")
        s.i(f"v_lshlrev_b32 v{a}, 4, v{a}")
        s.i(f"v_lshlrev_b32 v{b_}, v{a}, v{b_}")
        s.i(f"v_lshrrev_b32 v{a}, 1, v{self.vN}")
        for k in range(4):
            s.i(f"v_cmp_eq_u32 vcc, {k}, v{a}")
            s.i(f"v_cndmask_b32 v{self.vSEL+k}, 0, v{b_}, vcc")
        s.i(f"v_lshlrev_b32 v{a}, 4, v{self.vN}")
        s.i(f"v_lshl_add_u32 v{a}, v{self.vG}, 3, v{a}")
        s.i(f"s_add_u32 s{sT1}, s{sT1}, {KVT}")
        s.i(f"v_add_u32 v{self.vKVW}, s{sT1}, v{a}")
        s.i(f"v_lshrrev_b32 v{a}, 2, v{self.vN}")
        s.i(f"v_cmp_eq_u32 s[{sONE}:{sONE+1}], 1, v{a}")
        s.i(f"v_lshlrev_b32 v{self.vFLG}, 4, v{L}")
        s.i(f"v_add_u32 v{self.vFLG}, {FLAG}, v{self.vFLG}")

    def setup3(self, s):
        L = self.vLANE
        a, b_, c_, d_, e_ = [self.vT + i for i in range(5)]
        s.i(f"v_lshrrev_b32 v{a}, 1, v{self.vG}")
        s.i(f"v_mul_u32_u24 v{b_}, 1680, v{a}")
        s.i(f"v_and_b32 v{c_}, 3, v{self.vN}")
        s.i(f"v_mul_u32_u24 v{c_}, 80, v{c_}")
        s.i(f"v_add_u32 v{b_}, v{b_}, v{c_}")
        s.i(f"v_add_u32 v{b_}, {KVT}, v{b_}")
        s.i(f"v_mul_u32_u24 v{c_}, 320, v{a}")
        s.i(f"v_add_u32 v{self.vOA}, v{b_}, v{c_}")
        s.i(f"v_xor_b32 v{c_}, 1, v{a}")
        s.i(f"v_mul_u32_u24 v{c_}, 1280, v{c_}")
        s.i(f"v_add_u32 v{self.vOB}, v{b_}, v{c_}")
        s.i(f"v_add_u32 v{self.vOC}, 1600, v{b_}")
        s.i(f"v_lshrrev_b32 v{c_}, 2, v{self.vN}")
        s.i(f"v_cmp_eq_u32 vcc, v{c_}, v{self.vG}")
        s.i(f"v_mov_b32 v{d_}, {ZR}")
        s.i(f"v_cndmask_b32 v{self.vOA}, v{d_}, v{self.vOA}, vcc")
        s.i(f"v_cndmask_b32 v{self.vOB}, v{d_}, v{self.vOB}, vcc")
        s.i(f"v_cndmask_b32 v{self.vOC}, v{d_}, v{self.vOC}, vcc")
        s.i(f"s_lshl_b32 s{sT0}, s{sTB}, 3")
        s.i(f"s_lshl_b32 s{sT1}, s{sWAVE}, 1")
        s.i(f"s_add_u32 s{sT0}, s{sT0}, s{sT1}")
        s.i(f"s_mul_i32 s{sT0}, s{sT0}, 20480")
        s.i(f"s_mul_i32 s{sT1}, s{sPJ}, 1280")
        s.i(f"s_add_u32 s{sT0}, s{sT0}, s{sT1}")
        s.i(f"s_add_u32 s{sT0}, s{sT0}, {OBUF}")
        s.i(f"v_and_b32 v{b_}, 1, v{self.vG}")
        s.i(f"s_movk_i32 s{sT2}, 0x5000")
        s.i(f"v_mul_u32_u24 v{b_}, s{sT2}, v{b_}")
        s.i(f"v_lshl_add_u32 v{b_}, v{self.vN}, 4, v{b_}")
        s.i(f"v_add_u32 v{b_}, s{sT0}, v{b_}")
        s.i(f"v_mul_u32_u24 v{c_}, 768, v{a}")
        s.i(f"v_add_u32 v{self.vOS1}, v{b_}, v{c_}")
        s.i(f"v_add_u32 v{self.vOS2}, 512, v{b_}")
        s.i(f"v_mov_b32 v{c_}, {OOB}")
        s.i(f"v_cmp_gt_u32 vcc, 32, v{L}")
        s.i(f"v_cndmask_b32 v{self.vOS2}, v{c_}, v{self.vOS2}, vcc")
        s.i(f"s_and_b32 s{sT3}, s{sWAVE}, 1")
        s.i(f"v_bfe_u32 v{a}, v{L}, 2, 2")
        s.i(f"v_lshl_add_u32 v{a}, v{self.vG}, 2, v{a}")
        s.i(f"v_mul_u32_u24 v{a}, 160, v{a}")
        s.i(f"v_and_b32 v{b_}, 3, v{L}")
        s.i(f"v_mul_u32_u24 v{b_}, 40, v{b_}")
        s.i(f"s_mul_i32 s{sT0}, s{sT3}, 51200")
        s.i(f"s_add_u32 s{sT0}, s{sT0}, {WO}")
        s.i(f"v_add3_u32 v{self.vWOA}, v{a}, v{b_}, s{sT0}")
        s.i(f"s_lshl_b32 s{sT0}, s{sTB3}, 2")
        s.i(f"s_add_u32 s{sT1}, s{sT0}, s{sWAVE}")
        s.i(f"s_xor_b32 s{sT2}, s{sWAVE}, 1")
        s.i(f"s_add_u32 s{sT2}, s{sT0}, s{sT2}")
        s.i(f"s_mul_i32 s{sT4}, s{sT3}, 10240")
        s.i(f"s_add_u32 s{sT4}, s{sT4}, {OBUF}")
        s.i(f"s_mul_i32 s{sT0}, s{sT1}, 20480")
        s.i(f"s_add_u32 s{sT0}, s{sT0}, s{sT4}")
        s.i(f"v_lshlrev_b32 v{a}, 4, v{L}")
        s.i(f"v_add_u32 v{self.vOF}, s{sT0}, v{a}")
        s.i(f"s_mul_i32 s{sT0}, s{sT2}, 20480")
        s.i(f"s_add_u32 s{sT0}, s{sT0}, s{sT4}")
        s.i(f"v_add_u32 v{self.vOF2}, s{sT0}, v{a}")
        s.i(f"s_lshr_b32 s{sT0}, s{sTB3}, 1")
        s.i(f"s_and_b32 s{sT4}, s{sT0}, 1")
        s.i(f"s_lshl_b32 s{sT4}, s{sT4}, 4")
        s.i(f"s_lshl_b32 s{sT5}, s{sT3}, 3")
        s.i(f"s_add_u32 s{sT4}, s{sT4}, s{sT5}")
        s.i(f"s_lshl_b32 s{sT4}, s{sT4}, 3")
        s.i(f"s_lshr_b32 s{sT0}, s{sT0}, 1")
        s.i(f"s_add_u32 s{sT4}, s{sT4}, s{sT0}")
        s.i(f"v_and_b32 v{b_}, 7, v{L}")
        s.i(f"v_lshlrev_b32 v{b_}, 3, v{b_}")
        s.i(f"v_add_u32 v{b_}, s{sT4}, v{b_}")
        s.i(f"v_lshlrev_b32 v{b_}, 4, v{b_}")
        s.i(f"s_and_b32 s{sT0}, s{sT1}, 7")
        s.i(f"s_lshr_b32 s{sT0}, s{sT0}, 1")
        s.i(f"s_and_b32 s{sT5}, s{sT2}, 7")
        s.i(f"s_lshr_b32 s{sT5}, s{sT5}, 1")
        s.i(f"v_mov_b32 v{c_}, s{sT0}")
        s.i(f"v_mov_b32 v{d_}, s{sT5}")
        s.i(f"v_bfe_u32 v{e_}, v{L}, 3, 1")
        s.i(f"v_cmp_eq_u32 vcc, 0, v{e_}")
        s.i(f"v_cndmask_b32 v{c_}, v{d_}, v{c_}, vcc")
        s.i(f"v_lshl_add_u32 v{b_}, v{c_}, 2, v{b_}")
        s.i(f"v_add_u32 v{self.vS2}, {FLAG2}, v{b_}")
        s.i(f"s_lshl_b32 s{sT0}, s2, 2")
        s.i(f"s_add_u32 s{sT0}, s{sT0}, s{sWAVE}")
        s.i(f"s_lshl_b32 s{sT0}, s{sT0}, 2")
        s.i(f"s_add_u32 s{sT0}, s{sT0}, {FLAG2}")
        s.i(f"v_mov_b32 v{self.vF2W}, s{sT0}")
        s.i(f"v_mov_b32 v{self.vF2V}, s{sTAG}")
        s.i(f"s_mul_i32 s{sT0}, s{sWAVE}, 5120")
        s.i(f"v_add_u32 v{self.vEXW}, s{sT0}, v{a}")
        s.i(f"s_xor_b32 s{sT0}, s{sWAVE}, 1")
        s.i(f"s_mul_i32 s{sT0}, s{sT0}, 5120")
        s.i(f"v_add_u32 v{self.vEXR}, s{sT0}, v{a}")
        s.i(f"s_lshl_b32 s{sT1}, s{sT1}, 4")
        s.i(f"v_add_u32 v{a}, s{sT1}, v{self.vN}")
        s.i(f"s_movk_i32 s{sT2}, 1280")
        s.i(f"v_mul_u32_u24 v{a}, s{sT2}, v{a}")
        s.i(f"v_mul_u32_u24 v{b_}, 40, v{self.vG}")
        s.i(f"s_mul_i32 s{sT0}, s{sCB}, 160")
        s.i(f"v_add3_u32 v{self.vOUT}, v{a}, v{b_}, s{sT0}")

    def wo_offsets(self, s):
        a, b_, c_, d_ = [self.vT + i for i in range(4)]
        s.i(f"s_movk_i32 s{sT2}, 1280")
        s.i(f"s_mov_b32 s{sT3}, 52429")
        s.i(f"s_mul_i32 s{sT0}, s{sWAVE}, 80")
        for e in range(2):
            s.i(f"v_add_u32 v{a}, s{sT0}, v{self.vLANE}")
            if e: s.i(f"v_add_u32 v{a}, 64, v{a}")
            s.i(f"v_lshrrev_b32 v{b_}, 1, v{a}")
            s.i(f"v_mul_u32_u24 v{b_}, s{sT3}, v{b_}")
            s.i(f"v_lshrrev_b32 v{b_}, 18, v{b_}")
            s.i(f"v_mul_u32_u24 v{c_}, 10, v{b_}")
            s.i(f"v_sub_u32 v{a}, v{a}, v{c_}")
            s.i(f"v_and_b32 v{c_}, 12, v{b_}")
            s.i(f"v_lshlrev_b32 v{c_}, 1, v{c_}")
            s.i(f"v_lshrrev_b32 v{d_}, 4, v{b_}")
            s.i(f"v_lshl_or_b32 v{c_}, v{d_}, 2, v{c_}")
            s.i(f"v_and_b32 v{d_}, 3, v{b_}")
            s.i(f"v_or_b32 v{c_}, v{c_}, v{d_}")
            s.i(f"v_lshlrev_b32 v{a}, 4, v{a}")
            s.i(f"v_mad_u32_u24 v{self.vWOD+e}, v{c_}, s{sT2}, v{a}")

    def frag_reads(self, part, ks, buf, tag):
        out = []
        r = self.vAF + buf * 12
        for t in range(3):
            if part == "V":
                va = self.vPV if t < 2 else self.vP2V
                off = ks * 2560 + (40 * t if t < 2 else 0)
            else:
                va = self.vP0 if t < 2 else self.vP2
                off = R0 + ks * 2560 + (8 * t if t < 2 else 0)
            out.append(S().lds(f"ds_read_b64_tr_b16 v[{r+4*t}:{r+4*t+1}], v{va} offset:{off}", tag))
            out.append(S().lds(f"ds_read_b64_tr_b16 v[{r+4*t+2}:{r+4*t+3}], v{va} offset:{off+1280}", tag))
        return out
    def acc(self, tt, t):
        b = self.vACC + (tt * 3 + t) * 4
        return f"v[{b}:{b+3}]"
    def mfmas(self, ks, buf, first, orient):
        s = S()
        r = self.vAF + buf * 12
        for t in range(3):
            for tt in range(2):
                w = f"v[{r+4*t}:{r+4*t+3}]"
                x = self.xfrag(tt, ks)
                c = "0" if first else self.acc(tt, t)
                if orient == "T": s.i(f"v_mfma_f32_16x16x32_bf16 {self.acc(tt,t)}, {w}, {x}, {c}")
                else:             s.i(f"v_mfma_f32_16x16x32_bf16 {self.acc(tt,t)}, {x}, {w}, {c}")
        return s

    def k_reads(self, lb):
        out = []
        slot = (lb % 3) * 4096
        for ksl in range(2):
            ks = 2 * lb + ksl
            va = self.vXA0 if ksl == 0 else self.vXA1
            for tt in range(2):
                out.append(S().lds(f"ds_read_b128 {self.xfrag(tt,ks)}, v{va} offset:{slot + tt*2048}", f"kr{lb}"))
            out += self.frag_reads("K", ks, (2 * lb + ksl) % 4, f"kr{lb}")
        return out

    def phaseK(self):
        s = S()
        s.c("---- phase K ----")
        def ready(lb):
            tags = [f"x{lb}", f"WK{lb}"]
            if lb == 3: tags += ["phi"]
            if lb == 6: tags += ["pf"]
            self.tick(s, f"K{lb}_a")
            s.vmw(*tags)
            s.bar()
            self.tick(s, f"K{lb}_b")
        ready(0)
        for g in self.k_reads(0): s.extend(g)
        for lb in range(10):
            nxt = []
            if lb + 1 < 10:
                ready(lb + 1)
                nxt = self.k_reads(lb + 1)
            dm = []
            if lb + 3 < 10: dm = self.dma_x(lb + 3) + self.dma_w("K", lb + 3)
            else: dm = self.dma_w("V", lb - 7)
            m = S()
            m.lgw(f"kr{lb}")
            m.extend(self.mfmas(2 * lb, (2 * lb) % 4, lb == 0, "T"))
            m.extend(self.mfmas(2 * lb + 1, (2 * lb + 1) % 4, False, "T"))
            merged = S()
            gi = 0; di = 0; nm = 0
            for op in m:
                merged.append(op)
                if is_mfma(op):
                    nm += 1
                    k = 2 if gi < 8 else 1
                    for _ in range(k):
                        if gi < len(nxt): merged.extend(nxt[gi]); gi += 1
                    if nm % 2 == 0 and di < len(dm): merged.extend(dm[di]); di += 1
            while gi < len(nxt): merged.extend(nxt[gi]); gi += 1
            while di < len(dm): merged.extend(dm[di]); di += 1
            s.extend(merged)
            if lb == 3:
                self.fmap_consts(s)
        s.bar()
        self.stamp(s, "Kgemm")
        if self.dump == "K":
            s.extend(self.dump_regs([f"v{self.vACC+i}" for i in range(24)], "accK"))
            s.extend(self.dump_regs([f"a{self.aF+i}" for i in range(60)], "fc"))
        return s

    def publish_flag(self, s):
        a, b_ = self.vT + 6, self.vT + 7
        s.i(f"s_cmp_lg_u32 s{sWAVE}, 0")
        s.i("s_cbranch_scc1 L_noflag")
        s.i(f"s_lshl_b32 s{sT0}, s2, 2")
        s.i(f"s_add_u32 s{sT0}, s{sT0}, {FLAG}")
        s.i(f"v_mov_b32 v{a}, s{sT0}")
        s.i(f"v_mov_b32 v{b_}, s{sFLAGV}")
        s.i("s_mov_b64 exec, 1")
        s.vm(f"buffer_store_dword v{b_}, v{a}, {srd(S_WS)}, 0 offen sc1", "flag", True)
        s.i("s_mov_b64 exec, -1")
        s.i("L_noflag:")

    def flags_check(self, s):
        t = self.vT + 4
        F = self.vFL
        s.i(f"s_mov_b32 s{sCNT}, 0")
        s.vmw("fl")
        s.i("L_fl_check:")
        s.i(f"v_and_b32 v{t}, v{F}, v{F+1}")
        s.i(f"v_and_b32 v{t+1}, v{F+2}, v{F+3}")
        s.i(f"v_or_b32 v{t+2}, v{F}, v{F+1}")
        s.i(f"v_or_b32 v{t+3}, v{F+2}, v{F+3}")
        s.i(f"v_and_b32 v{t}, v{t}, v{t+1}")
        s.i(f"v_or_b32 v{t+2}, v{t+2}, v{t+3}")
        s.i(f"v_xor_b32 v{t}, s{sTAG}, v{t}")
        s.i(f"v_xor_b32 v{t+2}, s{sTAG}, v{t+2}")
        s.i(f"v_or_b32 v{t}, v{t}, v{t+2}")
        s.i(f"v_cmp_lt_u32 vcc, 15, v{t}")
        s.i("s_nop 1")
        s.i(f"s_or_b32 s{sM}, vcc_lo, vcc_hi")
        s.i(f"s_cmp_eq_u32 s{sM}, 0")
        s.i("s_cbranch_scc1 L_fl_ok")
        s.i(f"s_add_u32 s{sCNT}, s{sCNT}, 1")
        s.i(f"s_cmp_gt_u32 s{sCNT}, {SPIN_MAX}")
        s.i("s_cbranch_scc1 L_fl_ok")
        s.i(f"buffer_load_dwordx4 v[{F}:{F+3}], v{self.vFLG}, {srd(S_WS)}, 0 offen sc1")
        s.i("s_waitcnt vmcnt(0)")
        s.i("s_branch L_fl_check")
        s.i("L_fl_ok:")
        s.i(f"s_and_b32 s{sT0}, s{sGRP}, 3")
        s.i(f"s_cmp_eq_u32 s{sT0}, 1")
        s.i(f"s_cselect_b64 vcc, -1, 0")
        s.i(f"v_cndmask_b32 v{t}, v{F}, v{F+1}, vcc")
        s.i(f"s_cmp_eq_u32 s{sT0}, 2")
        s.i(f"s_cselect_b64 vcc, -1, 0")
        s.i(f"v_cndmask_b32 v{t}, v{t}, v{F+2}, vcc")
        s.i(f"s_cmp_eq_u32 s{sT0}, 3")
        s.i(f"s_cselect_b64 vcc, -1, 0")
        s.i(f"v_cndmask_b32 v{t}, v{t}, v{F+3}, vcc")
        s.i(f"v_cmp_ne_u32 vcc, s{sFLAGV}, v{t}")
        s.i(f"s_lshr_b32 s{sT1}, s{sGRP}, 2")
        s.i(f"s_mov_b32 s{sT2}, 0x55555555")
        s.i(f"s_lshl_b32 s{sT2}, s{sT2}, s{sT1}")
        s.i(f"s_or_b32 s{sT3}, vcc_lo, vcc_hi")
        s.i(f"s_and_b32 s{sT3}, s{sT3}, s{sT2}")
        s.i(f"s_cmp_eq_u32 s{sT3}, 0")
        s.i(f"s_cselect_b32 s{sFAST}, 1, 0")

    def fmap_consts(self, s):
        L = self.vLANE
        a, b_, c_, d_ = self.vT, self.vT + 1, self.vT + 2, self.vT + 3
        A0, A1, X0, X1 = self.vT + 4, self.vT + 5, self.vT + 6, self.vT + 7
        s.i(f"v_bfe_u32 v{a}, v{L}, 2, 2")
        s.i(f"v_and_b32 v{b_}, 3, v{L}")
        s.i(f"v_lshrrev_b32 v{c_}, 1, v{self.vG}")
        s.i(f"v_mul_u32_u24 v{d_}, 800, v{c_}")
        s.i(f"v_mul_u32_u24 v{a}, 40, v{a}")
        s.i(f"v_add_u32 v{d_}, v{d_}, v{a}")
        s.i(f"v_add_u32 v{d_}, {WP}, v{d_}")
        s.i(f"v_and_b32 v{a}, 1, v{self.vG}")
        s.i(f"v_mul_u32_u24 v{A0}, 320, v{a}")
        s.i(f"v_add_u32 v{A0}, v{A0}, v{d_}")
        s.i(f"v_add_u32 v{X0}, 640, v{d_}")
        s.i(f"v_mov_b32 v{A1}, {ZR}")
        s.i(f"v_lshrrev_b32 v{d_}, 1, v{b_}")
        s.i(f"v_cmp_eq_u32 s[{sM}:{sM+1}], v{d_}, v{c_}")
        s.i(f"v_and_b32 v{d_}, 1, v{b_}")
        s.i(f"v_cmp_eq_u32 s[{sM2}:{sM2+1}], 0, v{d_}")
        s.i(f"v_cmp_eq_u32 vcc, 0, v{a}")
        s.i(f"s_and_b64 s[{sT0}:{sT0+1}], s[{sM}:{sM+1}], s[{sM2}:{sM2+1}]")
        s.i(f"s_andn2_b64 s[{sT2}:{sT2+1}], s[{sM}:{sM+1}], s[{sM2}:{sM2+1}]")
        s.i(f"s_and_b64 s[{sM}:{sM+1}], s[{sT0}:{sT0+1}], vcc")
        s.i(f"s_and_b64 s[{sM2}:{sM2+1}], s[{sT2}:{sT2+1}], vcc")
        s.i("s_nop 1")
        s.i(f"v_cndmask_b32 v{a}, v{A1}, v{A0}, s[{sT2}:{sT2+1}]")
        s.i(f"v_cndmask_b32 v{A0}, v{A1}, v{A0}, s[{sT0}:{sT0+1}]")
        s.i(f"v_cndmask_b32 v{X1}, v{A1}, v{X0}, s[{sM2}:{sM2+1}]")
        s.i(f"v_cndmask_b32 v{X0}, v{A1}, v{X0}, s[{sM}:{sM+1}]")
        s.i(f"v_mov_b32 v{A1}, v{a}")
        for t in range(5):
            f = self.aF + t * 12
            s.lds(f"ds_read_b64_tr_b16 a[{f}:{f+1}], v{A0} offset:{8*t}", "fc")
            s.lds(f"ds_read_b64_tr_b16 a[{f+2}:{f+3}], v{A0} offset:{8*t+160}", "fc")
            s.lds(f"ds_read_b64_tr_b16 a[{f+4}:{f+5}], v{A1} offset:{8*t}", "fc")
            s.lds(f"ds_read_b64_tr_b16 a[{f+6}:{f+7}], v{A1} offset:{8*t+160}", "fc")
            s.lds(f"ds_read_b64_tr_b16 a[{f+8}:{f+9}], v{X0} offset:{8*t}", "fc")
            s.lds(f"ds_read_b64_tr_b16 a[{f+10}:{f+11}], v{X1} offset:{8*t}", "fc")

    def epi_body(self, which):
        s = S()
        B = self.vB1; PP = self.vPP; E = self.vE
        def A(tt, t, r): return self.vACC + (tt * 3 + t) * 4 + r
        if which == "K": s.lgw("fc")
        for tt in range(2):
            for t in range(2):
                s.i(f"v_cvt_pk_bf16_f32 v{B+4*tt+2*t}, v{A(tt,t,0)}, v{A(tt,t,1)}")
                s.i(f"v_cvt_pk_bf16_f32 v{B+4*tt+2*t+1}, v{A(tt,t,2)}, v{A(tt,t,3)}")
        for tt in range(2):
            s.i(f"v_cvt_pk_bf16_f32 v{B+8+2*tt}, v{A(tt,2,0)}, v{A(tt,2,1)}")
            s.i(f"v_cvt_pk_bf16_f32 v{B+8+2*tt+1}, v{A(tt,2,2)}, v{A(tt,2,3)}")
        for j in range(3):
            for t in range(5):
                f = self.aF + t * 12 + 4 * j
                c = "0" if j == 0 else f"v[{PP+4*t}:{PP+4*t+3}]"
                s.i(f"v_mfma_f32_16x16x32_bf16 v[{PP+4*t}:{PP+4*t+3}], a[{f}:{f+3}], v[{B+4*j}:{B+4*j+3}], {c}")
        if self.dump == "P" + which:
            s.extend(self.dump_regs([f"v{PP+i}" for i in range(20)], "P" + which))
        mx, mn, sp, sn = self.vT, self.vT + 2, self.vT + 4, self.vT + 6
        s.i(f"v_max3_f32 v{mx}, v{PP}, v{PP+1}, v{PP+2}")
        s.i(f"v_min3_f32 v{mn}, v{PP}, v{PP+1}, v{PP+2}")
        for i in range(3, 19, 2):
            s.i(f"v_max3_f32 v{mx}, v{mx}, v{PP+i}, v{PP+i+1}")
            s.i(f"v_min3_f32 v{mn}, v{mn}, v{PP+i}, v{PP+i+1}")
        s.i(f"v_max_f32 v{mx}, v{mx}, v{PP+19}")
        s.i(f"v_min_f32 v{mn}, v{mn}, v{PP+19}")
        s.i(f"v_mul_f32 v{mx}, s{sL2E}, v{mx}")
        s.i(f"v_mul_f32 v{mn}, s{sL2E}, v{mn}")
        pk = self.opts.get("pk", True)
        if pk:
            s.i(f"s_mov_b32 s{sT0}, s{sL2E}")
            s.i(f"s_mov_b32 s{sT0+1}, s{sL2E}")
            for i in range(0, 20, 2):
                s.i(f"v_pk_fma_f32 v[{E+i}:{E+i+1}], v[{PP+i}:{PP+i+1}], s[{sT0}:{sT0+1}], v[{mx}:{mx+1}] op_sel_hi:[1,1,0] neg_lo:[0,0,1] neg_hi:[0,0,1]")
                s.i(f"v_pk_fma_f32 v[{E+20+i}:{E+20+i+1}], v[{PP+i}:{PP+i+1}], s[{sT0}:{sT0+1}], v[{mn}:{mn+1}] op_sel_hi:[1,1,0] neg_lo:[1,0,0] neg_hi:[1,0,0]")
        else:
            for i in range(20):
                s.i(f"v_fma_f32 v{E+i}, v{PP+i}, s{sL2E}, -v{mx}")
                s.i(f"v_fma_f32 v{E+20+i}, -v{PP+i}, s{sL2E}, v{mn}")
        for i in range(40): s.i(f"v_exp_f32 v{E+i}, v{E+i}")
        if pk:
            s.i(f"v_pk_add_f32 v[{sp}:{sp+1}], v[{E}:{E+1}], v[{E+2}:{E+3}]")
            s.i(f"v_pk_add_f32 v[{sn}:{sn+1}], v[{E+20}:{E+21}], v[{E+22}:{E+23}]")
            for i in range(4, 20, 2):
                s.i(f"v_pk_add_f32 v[{sp}:{sp+1}], v[{sp}:{sp+1}], v[{E+i}:{E+i+1}]")
                s.i(f"v_pk_add_f32 v[{sn}:{sn+1}], v[{sn}:{sn+1}], v[{E+20+i}:{E+20+i+1}]")
            s.i(f"v_add_f32 v{sp}, v{sp}, v{sp+1}")
            s.i(f"v_add_f32 v{sn}, v{sn}, v{sn+1}")
        else:
            s.i(f"v_add_f32 v{sp}, v{E}, v{E+1}")
            s.i(f"v_add_f32 v{sn}, v{E+20}, v{E+21}")
            for i in range(2, 20):
                s.i(f"v_add_f32 v{sp}, v{sp}, v{E+i}")
                s.i(f"v_add_f32 v{sn}, v{sn}, v{E+20+i}")
        s.i(f"v_rcp_f32 v{sp}, v{sp}")
        s.i(f"v_rcp_f32 v{sn}, v{sn}")
        if pk:
            for i in range(0, 20, 2):
                s.i(f"v_pk_mul_f32 v[{E+i}:{E+i+1}], v[{E+i}:{E+i+1}], v[{sp}:{sp+1}] op_sel_hi:[1,0]")
                s.i(f"v_pk_mul_f32 v[{E+20+i}:{E+20+i+1}], v[{E+20+i}:{E+20+i+1}], v[{sn}:{sn+1}] op_sel_hi:[1,0]")
        else:
            for i in range(20):
                s.i(f"v_mul_f32 v{E+i}, v{E+i}, v{sp}")
                s.i(f"v_mul_f32 v{E+20+i}, v{E+20+i}, v{sn}")
        for i in range(20):
            s.i(f"v_cvt_pk_bf16_f32 v{self.vPHI+i}, v{E+2*i}, v{E+2*i+1}")
            if which == "K" and i % 4 == 3:
                j = i // 4
                s.lds(f"ds_write_b128 v{self.vPKW}, v[{self.vPHI+4*j}:{self.vPHI+4*j+3}] offset:{16*j}", "pkw")
        return s

    def epiFeat(self, which):
        s = S(); s.c(f"---- feature epilogue {which} ----")
        body = self.epi_body(which)
        if which == "K":
            bg = [x for lb in range(3, 7) for x in self.dma_w("V", lb)]
            if self.opts.get("touch", 1):
                bg.append(S().vm(f"buffer_load_dword v{self.vTCD}, v{self.vTCH}, {srd(S_WS)}, 0 offen", "tch"))
            self.publish_flag(s)
        else:
            bg = self.bg_qe
        body = weave_frac(body, bg, lo=0.05, hi=0.95)
        s.extend(body)
        self.stamp(s, "epi" + which)
        if self.dump == "PHI" + which:
            s.extend(self.dump_regs([f"v{self.vPHI+i}" for i in range(20)], "PHI" + which))
        return s

    def gemm_resident(self, part, bg, bg_start=0, waits=(0, 8, 16), bg_end=20, plan=None):
        s = S()
        orient = "N" if part == "V" else "T"
        def ready(ks):
            if ks in waits:
                nxt = min([w for w in waits if w > ks] + [20])
                s.vmw(*[f"W{part}{b}" for b in range(ks // 2, nxt // 2)])
                s.bar()
        ready(0)
        for g in self.frag_reads(part, 0, 0, f"{part}f0"): s.extend(g)
        for g in self.frag_reads(part, 1, 1, f"{part}f1"): s.extend(g)
        if plan is None:
            bg = list(bg)
            nb = len(bg)
            slots = list(range(bg_start, bg_end))
            plan = {}
            for i in range(nb):
                plan.setdefault(slots[i * len(slots) // max(nb, 1)], []).append(bg[i])
        for ks in range(20):
            self.tick(s, f"{part}{ks:02d}")
            nxt = []
            if ks + 2 < 20:
                ready(ks + 2)
                nxt = self.frag_reads(part, ks + 2, (ks + 2) % 4, f"{part}f{ks+2}")
            s.lgw(f"{part}f{ks}")
            m = self.mfmas(ks, ks % 4, ks == 0, orient)
            j = 0
            extra = plan.get(ks, [])
            for op in m:
                s.append(op)
                if j < len(nxt): s.extend(nxt[j])
                j += 1
                if extra and j in (2, 4, 6) and len(extra):
                    s.extend(extra[0]); extra = extra[1:]
            for g in extra: s.extend(g)
        return s

    def phaseV(self):
        s = S(); s.c("---- phase V ----")
        plan = {0: self.dma_w("V", 7), 2: self.dma_w("V", 8), 4: self.dma_w("V", 9)}
        for i, ks in enumerate((6, 8, 11, 13, 16, 18)): plan[ks] = self.dma_w("Q", i)
        s.extend(self.gemm_resident("V", None, plan=plan))
        self.stamp(s, "Vgemm")
        if self.dump == "V":
            s.extend(self.dump_regs([f"v{self.vACC+i}" for i in range(24)], "accV"))
        return s

    def kv(self):
        s = S(); s.c("---- kv partial ----")
        B = self.vB1
        def A(tt, t, r): return self.vACC + (tt * 3 + t) * 4 + r
        AF = self.vAF
        s.i(f"v_mov_b32 v{self.vT}, 0x3f803f80")
        for t in range(3):
            for tt in range(2):
                s.i(f"v_cvt_pk_bf16_f32 v{B+4*t+2*tt}, v{A(tt,t,0)}, v{A(tt,t,1)}")
                s.i(f"v_cvt_pk_bf16_f32 v{B+4*t+2*tt+1}, v{A(tt,t,2)}, v{A(tt,t,3)}")
            if t == 2:
                for i in range(4):
                    s.i(f"v_cndmask_b32 v{B+8+i}, v{B+8+i}, v{self.vT}, s[{sONE}:{sONE+1}]")
            s.lds(f"ds_write_b128 v{self.vBVW}, v[{B+4*t}:{B+4*t+3}] offset:{t*1024}", "bvw")
        s.lg0()
        self.tick(s, "kv_a")
        s.bar()
        self.tick(s, "kv_b")
        BF = self.vE
        for v in range(4):
            s.lds(f"ds_read_b128 v[{BF+4*v}:{BF+4*v+3}], v{self.vBVR} offset:{v*3072}", f"kvr{v}")
            for mt in range(3):
                r = AF + (v * 3 + mt) * 4
                off = v * 5120 + mt * 32
                s.lds(f"ds_read_b64_tr_b16 v[{r}:{r+1}], v{self.vPKR} offset:{off}", f"kvr{v}")
                s.lds(f"ds_read_b64_tr_b16 v[{r+2}:{r+3}], v{self.vPKR} offset:{off+2560}", f"kvr{v}")
        D = self.vPP
        for x in self.dma_w("Q", 6) + self.dma_w("Q", 7): s.extend(x)
        for v in range(4):
            s.lgw(f"kvr{v}")
            for mt in range(3):
                r = AF + (v * 3 + mt) * 4
                c = "0" if v == 0 else f"v[{D+4*mt}:{D+4*mt+3}]"
                s.i(f"v_mfma_f32_16x16x32_bf16 v[{D+4*mt}:{D+4*mt+3}], v[{r}:{r+3}], v[{BF+4*v}:{BF+4*v+3}], {c}")
        self.tick(s, "kv_c")
        for mt in range(3):
            s.i(f"v_cvt_pk_bf16_f32 v{B+2*mt}, v{D+4*mt}, v{D+4*mt+1}")
            s.i(f"v_cvt_pk_bf16_f32 v{B+2*mt+1}, v{D+4*mt+2}, v{D+4*mt+3}")
            va = self.vSTW if mt < 2 else self.vSTW2
            s.lds(f"ds_write_b64 v{va}, v[{B+2*mt}:{B+2*mt+1}] offset:{32*mt}", "stw")
        s.i(f"v_cmp_gt_u32 vcc, 210, v0")
        s.lg0()
        self.tick(s, "kv_d")
        s.bar()
        self.tick(s, "kv_e")
        R = AF
        s.lds(f"ds_read_b128 v[{R}:{R+3}], v{self.vSTR}", "str")
        s.lg0()
        for i in range(4): s.i(f"v_cndmask_b32 v{R+i}, 0, v{R+i}, vcc")
        s.vm(f"buffer_store_dwordx4 v[{R}:{R+3}], v{self.vPST}, {srd(S_WS)}, 0 offen sc1", "pst")
        self.stamp(s, "kvpub")
        for x in self.dma_w("Q", 8) + self.dma_w("Q", 9): s.extend(x)
        if self.dump == "KV": s.vm0()
        return s

    def hop1_load_groups(self, tag):
        H = self.aH
        gs = []
        first = True
        for j in range(4):
            opt = (j == 3)
            for pq in range(4):
                g = S()
                if first:
                    for q in range(1, 4): g.i(f"s_mov_b32 s{sT0+q}, {q*4*PS}")
                    first = False
                if opt:
                    lab = f"L_h1s_{tag}_{pq}"
                    g.i(f"s_cmp_ge_u32 s{sWAVE}, 2")
                    g.i(f"s_cbranch_scc1 {lab}")
                r = H + (j * 4 + pq) * 4
                so = "0" if pq == 0 else f"s{sT0+pq}"
                g.vm(f"buffer_load_dwordx4 a[{r}:{r+3}], v{self.vH1}, {srd(S_WS)}, {so} offen offset:{j*1024} sc1", tag, opt)
                if opt: g.i(f"{lab}:")
                gs.append(g)
        return gs

    def phaseQ(self):
        s = S(); s.c("---- phase Q ----")
        F = self.vFL
        fl = S().vm(f"buffer_load_dwordx4 v[{F}:{F+3}], v{self.vFLG}, {srd(S_WS)}, 0 offen sc1", "fl")
        plan = {0: [fl], 1: self.dma_wo(17, "woC"), 3: self.dma_wo(18, "woC"), 5: self.dma_wo(19, "woC"), 7: self.dma_wo(0, "woA"), 8: self.dma_wo(1, "woA"), 9: self.dma_wo(2, "woA")}
        h1 = self.hop1_load_groups("h1") if self.stop >= 7 else []
        self.bg_qe = [x for ks in (3, 4, 5, 6, 7, 8, 9) for x in self.dma_wo(ks, "woA")]
        main = self.gemm_resident("Q", None, waits=(0, 8, 16), plan=plan)
        idx = [i for i, op in enumerate(main) if is_mfma(op)]
        cut = idx[59] + 1
        head, tail = S(main[:cut]), S(main[cut:])
        s.extend(head)
        if self.stop >= 7: self.flags_check(s)
        tail, left = weave(tail, h1, every=3, start=1)
        s.extend(tail)
        for g in left: s.extend(g)
        self.stamp(s, "Qgemm")
        if self.dump == "Q":
            s.extend(self.dump_regs([f"v{self.vACC+i}" for i in range(24)], "accQ"))
        return s

    def hop1(self):
        s = S(); s.c("---- hop1: gather + reduce kv partials ----")
        H = self.aH
        D = self.vAF
        t = self.vT
        s.i(f"s_mov_b32 s{sCNT}, 0")
        self.tick(s, "h1_a")
        s.vmw("h1")
        self.tick(s, "h1_b")
        s.i("L_h1_check:")
        s.i(f"s_cmp_lt_u32 s{sWAVE}, 2")
        s.i("s_cbranch_scc1 L_h1_nozero")
        for i in range(16): s.i(f"v_accvgpr_write_b32 a{H+48+i}, 0")
        s.i("s_nop 1")
        s.i("L_h1_nozero:")
        for pq in range(4):
            for j in range(4):
                r = H + (j * 4 + pq) * 4
                c = "0" if pq == 0 else f"v[{D+4*j}:{D+4*j+3}]"
                s.i(f"v_mfma_f32_16x16x32_bf16 v[{D+4*j}:{D+4*j+3}], v[{self.vSEL}:{self.vSEL+3}], a[{r}:{r+3}], {c}")
        s.i("s_nop 7")
        s.i(f"v_pk_add_f32 v[{t}:{t+1}], v[{D}:{D+1}], v[{D+2}:{D+3}]")
        s.i(f"v_pk_add_f32 v[{t+2}:{t+3}], v[{D+4}:{D+5}], v[{D+6}:{D+7}]")
        for i in range(8, 16, 4):
            s.i(f"v_pk_add_f32 v[{t}:{t+1}], v[{t}:{t+1}], v[{D+i}:{D+i+1}]")
            s.i(f"v_pk_add_f32 v[{t+2}:{t+3}], v[{t+2}:{t+3}], v[{D+i+2}:{D+i+3}]")
        s.i(f"v_pk_add_f32 v[{t}:{t+1}], v[{t}:{t+1}], v[{t+2}:{t+3}]")
        s.i(f"v_cmp_u_f32 vcc, v{t}, v{t+1}")
        s.i("s_nop 1")
        s.i(f"s_or_b32 s{sM}, vcc_lo, vcc_hi")
        s.i(f"s_cmp_eq_u32 s{sM}, 0")
        s.i("s_cbranch_scc1 L_h1_ok")
        s.i("L_h1_poll:")
        s.i(f"s_add_u32 s{sCNT}, s{sCNT}, 1")
        s.i(f"s_cmp_gt_u32 s{sCNT}, {SPIN_MAX}")
        s.i("s_cbranch_scc1 L_h1_ok")
        s.i(f"buffer_load_dword v{self.vSM}, v{self.vS1}, {srd(S_WS)}, 0 offen sc1")
        s.i("s_waitcnt vmcnt(0)")
        s.i(f"v_cmp_eq_u32 vcc, -1, v{self.vSM}")
        s.i("s_nop 1")
        s.i(f"s_or_b32 s{sT0}, vcc_lo, vcc_hi")
        s.i(f"s_cmp_lg_u32 s{sT0}, 0")
        s.i("s_cbranch_scc1 L_h1_poll")
        for g in self.hop1_load_groups("h1r"): s.extend(g)
        s.i("s_waitcnt vmcnt(0)")
        s.i("s_branch L_h1_check")
        s.i("L_h1_ok:")
        self.tick(s, "h1_c")
        s.call(lambda: setattr(self.P, "vm", [x for x in self.P.vm if x[0] not in ("h1r",)]))
        bg = [x for ks in (10, 11, 12) for x in self.dma_wo(ks, "woB")]
        w = S()
        for j in range(4):
            w.i(f"v_cvt_pk_bf16_f32 v{t+2*(j&1)}, v{D+4*j}, v{D+4*j+1}")
            w.i(f"v_cvt_pk_bf16_f32 v{t+2*(j&1)+1}, v{D+4*j+2}, v{D+4*j+3}")
            opt = (j == 3)
            if opt:
                w.i(f"s_cmp_ge_u32 s{sWAVE}, 2")
                w.i("s_cbranch_scc1 L_h1_skipw")
            w.i("s_mov_b64 exec, 0xffffffff")
            w.lds(f"ds_write_b64 v{self.vKVW}, v[{t+2*(j&1)}:{t+2*(j&1)+1}] offset:{j*1024}", "kvw")
            w.i("s_mov_b64 exec, -1")
            if opt: w.i("L_h1_skipw:")
        s.extend(w)
        for x in bg: s.extend(x)
        s.lg0()
        s.bar()
        self.bg_o = [x for ks in range(13, 17) for x in self.dma_wo(ks, "woB")]
        self.stamp(s, "hop1")
        return s

    def ocomp(self):
        s = S(); s.c("---- o = phi_q kv / den ----")
        AO = 64
        def reads(i):
            out = []
            for t in range(6):
                r = AO + (t * 5 + i) * 4
                if t < 4: va, off = self.vOA, 320 * t + 16 * i
                elif t == 4: va, off = self.vOB, 16 * i
                else: va, off = self.vOC, 16 * i
                out.append(S().lds(f"ds_read_b128 a[{r}:{r+3}], v{va} offset:{off}", f"oa{i}"))
            return out
        D = self.vAF
        for g in reads(0) + reads(1): s.extend(g)
        bg = list(self.bg_o); self.bg_o = []
        for i in range(5):
            s.lgw(f"oa{i}")
            nxt = reads(i + 2) if i + 2 < 5 else []
            for t in (5, 0, 1, 2, 3, 4):
                r = AO + (t * 5 + i) * 4
                c = "0" if i == 0 else f"v[{D+4*t}:{D+4*t+3}]"
                s.i(f"v_mfma_f32_16x16x32_bf16 v[{D+4*t}:{D+4*t+3}], a[{r}:{r+3}], v[{self.vPHI+4*i}:{self.vPHI+4*i+3}], {c}")
                if nxt: s.extend(nxt.pop(0))
                elif bg and i < 3: s.extend(bg.pop(0))
            if bg and i < 3: s.extend(bg.pop(0));
            if bg and i < 3: s.extend(bg.pop(0))
        for g in bg: s.extend(g)
        self.tick(s, "o_m")
        t0 = self.vT
        s.i(f"v_add_f32 v{t0}, 0x358637bd, v{D+20}")
        s.i(f"v_rcp_f32 v{t0}, v{t0}")
        O = self.vO
        for i in range(0, 20, 2): s.i(f"v_pk_mul_f32 v[{D+i}:{D+i+1}], v[{D+i}:{D+i+1}], v[{t0}:{t0+1}] op_sel_hi:[1,0]")
        for i in (8, 9, 0, 1, 2, 3, 4, 5, 6, 7): s.i(f"v_cvt_pk_bf16_f32 v{O+i}, v{D+2*i}, v{D+2*i+1}")
        s.i(f"v_permlane32_swap_b32 v{O+8}, v{O+10}")
        s.i(f"v_permlane32_swap_b32 v{O+9}, v{O+11}")
        for mode in ((0, 1) if self.fast else (0,)):
            fl = "" if mode == 1 else " sc1"
            if self.fast:
                if mode == 0:
                    s.i(f"s_cmp_eq_u32 s{sFAST}, 1")
                    s.i("s_cbranch_scc1 L_ost_fast")
                else:
                    s.i("s_branch L_ost_done")
                    s.i("L_ost_fast:")
            opt = (mode == 1)
            s.vm(f"buffer_store_dwordx4 v[{O}:{O+3}], v{self.vOS1}, {srd(S_WS)}, 0 offen{fl}", "ost", opt)
            s.vm(f"buffer_store_dwordx4 v[{O+4}:{O+7}], v{self.vOS1}, {srd(S_WS)}, 0 offen offset:256{fl}", "ost", opt)
            s.vm(f"buffer_store_dwordx4 v[{O+8}:{O+11}], v{self.vOS2}, {srd(S_WS)}, 0 offen{fl}", "ost", opt)
            s.i("s_waitcnt vmcnt(0)")
            s.i("s_mov_b64 exec, 1")
            s.vm(f"buffer_store_dword v{self.vF2V}, v{self.vF2W}, {srd(S_WS)}, 0 offen{fl}", "of2", True)
            s.i("s_mov_b64 exec, -1")
        if self.fast: s.i("L_ost_done:")
        s.call(lambda: setattr(self.P, "vm", [x for x in self.P.vm if x[0] == "of2"]))
        self.stamp(s, "opub")
        if self.dump == "O": s.vm0()
        return s

    def of_load_groups(self, tag):
        F = self.vF
        gs = []
        for k in range(10):
            for tl in range(2):
                g = S()
                if k == 0 and tl == 0:
                    g.i(f"s_movk_i32 s{sT1}, 4096")
                    g.i(f"s_movk_i32 s{sT2}, 8192")
                va = self.vOF if tl == 0 else self.vOF2
                r = F + (k * 2 + tl) * 4
                so = "0" if k < 4 else f"s{sT0 + k//4}"
                g.vm(f"buffer_load_dwordx4 v[{r}:{r+3}], v{va}, {srd(S_WS)}, {so} offen offset:{(k%4)*1024} sc1", f"{tag}{k}")
                gs.append(g)
        return gs

    def wo_reads(self, k):
        out = []
        for ct in range(5):
            r = (k * 5 + ct) * 4
            off = k * 5120 + 8 * ct
            out.append(S().lds(f"ds_read_b64_tr_b16 a[{r}:{r+1}], v{self.vWOA} offset:{off}", f"wof{k}"))
            out.append(S().lds(f"ds_read_b64_tr_b16 a[{r+2}:{r+3}], v{self.vWOA} offset:{off+2560}", f"wof{k}"))
        return out

    def p3(self):
        s = S(); s.c("---- P3: out = o @ wo ----")
        F = self.vF
        self.tick(s, "P3_a")
        s.bar()
        self.tick(s, "P3_b")
        NPRE = self.opts.get("npre", 3)
        for k in range(NPRE):
            for g in self.wo_reads(k): s.extend(g)
        s.i(f"s_mov_b32 s{sCNT}, 0")
        s.i("L_h2_poll:")
        s.i(f"buffer_load_dword v{self.vSM}, v{self.vS2}, {srd(S_WS)}, 0 offen sc1")
        s.i(f"s_add_u32 s{sCNT}, s{sCNT}, 1")
        s.i(f"s_cmp_gt_u32 s{sCNT}, {SPIN_MAX}")
        s.i("s_cbranch_scc1 L_h2_go")
        s.i("s_waitcnt vmcnt(0)")
        s.i(f"v_cmp_ne_u32 vcc, s{sTAG}, v{self.vSM}")
        s.i("s_nop 1")
        s.i(f"s_and_b32 s{sT0}, vcc_lo, 0xffff")
        s.i("s_cbranch_scc1 L_h2_poll")
        s.i("L_h2_go:")
        s.call(lambda: setattr(self.P, "vm", []))
        self.tick(s, "P3_seen")
        lg = self.of_load_groups("of")
        npre = 8
        for g in lg[:npre]: s.extend(g)
        rest = lg[npre:]
        ACC = self.vACC
        for k in range(10):
            s.vmw(f"of{k}")
            s.lgw(f"wof{k}")
            nxt = self.wo_reads(k + NPRE) if k + NPRE < 10 else []
            order = [(tl, ct) for tl in (0, 1) for ct in range(5)] if k < 9 else [(tl, ct) for tl in (1, 0) for ct in range(5)]
            n = 0
            for (tl, ct) in order:
                r = (k * 5 + ct) * 4
                d = ACC + (tl * 5 + ct) * 4
                f = F + (k * 2 + tl) * 4
                c = "0" if k == 0 else f"v[{d}:{d+3}]"
                s.i(f"v_mfma_f32_16x16x32_bf16 v[{d}:{d+3}], a[{r}:{r+3}], v[{f}:{f+3}], {c}")
                n += 1
                if nxt: s.extend(nxt.pop(0))
                if n in (3, 7) and rest: s.extend(rest.pop(0))
                if k == 9 and n >= 8:
                    ct2 = n - 8
                    d2 = ACC + (5 + ct2) * 4
                    s.lds(f"ds_write_b128 v{self.vEXW}, v[{d2}:{d2+3}] offset:{R0 + ct2*1024}", "exw")
        self.stamp(s, "gemm3")
        for ct2 in (3, 4):
            d2 = ACC + (5 + ct2) * 4
            s.lds(f"ds_write_b128 v{self.vEXW}, v[{d2}:{d2+3}] offset:{R0 + ct2*1024}", "exw")
        s.lg0()
        s.bar()
        X = 104
        for ct in range(5):
            s.lds(f"ds_read_b128 v[{X+4*ct}:{X+4*ct+3}], v{self.vEXR} offset:{R0 + ct*1024}", f"exr{ct}")
        O = self.vO
        fl = self.opts.get("outfl", 0)
        fls = {0: "", 1: " sc1", 2: " nt", 3: " sc0 sc1"}[fl]
        for ct in range(5):
            s.lgw(f"exr{ct}")
            for i in (4*ct, 4*ct+2): s.i(f"v_pk_add_f32 v[{ACC+i}:{ACC+i+1}], v[{ACC+i}:{ACC+i+1}], v[{X+i}:{X+i+1}]")
            for i in (2*ct, 2*ct+1): s.i(f"v_cvt_pk_bf16_f32 v{O+i}, v{ACC+2*i}, v{ACC+2*i+1}")
            if ct == 1: s.vm(f"buffer_store_dwordx4 v[{O}:{O+3}], v{self.vOUT}, {srd(S_OUT)}, 0 offen{fls}", "out")
            if ct == 3: s.vm(f"buffer_store_dwordx4 v[{O+4}:{O+7}], v{self.vOUT}, {srd(S_OUT)}, 0 offen offset:16{fls}", "out")
        s.vm(f"buffer_store_dwordx2 v[{O+8}:{O+9}], v{self.vOUT}, {srd(S_OUT)}, 0 offen offset:32{fls}", "out")
        s.i(f"s_or_b32 s{sT0}, s2, s{sWAVE}")
        s.i(f"s_cmp_lg_u32 s{sT0}, 0")
        s.i("s_cbranch_scc1 L_noep")
        s.i(f"v_mov_b32 v{self.vT}, {EPOCH}")
        s.i(f"v_mov_b32 v{self.vT+1}, s{sEPN}")
        s.i("s_mov_b64 exec, 1")
        s.vm(f"buffer_store_dword v{self.vT+1}, v{self.vT}, {srd(S_WS)}, 0 offen sc1", "ep", True)
        s.i("s_mov_b64 exec, -1")
        s.i("L_noep:")
        self.stamp(s, "out")
        return s

    def finish(self):
        P = self.P
        if self.profile:
            P.vm_drain()
            ins = "s_memtime" if self.ticks is not None else "s_memrealtime"
            P(f"{ins} s[100:101]"); self.stampnames.append("end"); nlast = self.nstamp; self.nstamp += 1
            P("s_waitcnt lgkmcnt(0)")
            P(f"s_lshl_b32 s{sT0}, s2, 2")
            P(f"s_add_u32 s{sT0}, s{sT0}, s{sWAVE}")
            P(f"s_lshl_b32 s{sT0}, s{sT0}, 7")
            P(f"s_add_u32 s{sT0}, s{sT0}, {STAMPS}")
            P("v_mov_b32 v2, 0")
            P("s_mov_b64 exec, 1")
            for i in range(16):
                if i < self.nstamp:
                    r = 100 if i == nlast else stamp_reg(i)
                    P(f"v_mov_b32 v4, s{r}")
                    P(f"v_mov_b32 v5, s{r+1}")
                else:
                    P("v_mov_b32 v4, 0"); P("v_mov_b32 v5, 0")
                P(f"buffer_store_dwordx2 v[4:5], v2, {srd(S_WS)}, s{sT0} offen offset:{8*i}")
                P("s_nop 1")
            P("s_waitcnt vmcnt(0)")
        P("L_end:")
        P("s_endpgm")

HEADER = f"""; hedgehog linear attention: fused persistent kernel (K/V/Q projections, feature maps, kv reduction, output projection)
; @launch grid=(256,1,1) block=(256,1,1) lds={LDS_SIZE}
.amdgcn_target "amdgcn-amd-amdhsa--gfx950"
.text
.globl {NAME}_kernel
.p2align 8
.type {NAME}_kernel,@function
{NAME}_kernel:
"""
FOOTER = f"""
.section .rodata,"a"
.p2align 6
.amdhsa_kernel {NAME}_kernel
  .amdhsa_next_free_vgpr 512
  .amdhsa_next_free_sgpr 102
  .amdhsa_accum_offset 256
  .amdhsa_group_segment_fixed_size 0
  .amdhsa_kernarg_size 56
  .amdhsa_user_sgpr_count 2
  .amdhsa_user_sgpr_kernarg_segment_ptr 1
  .amdhsa_system_sgpr_workgroup_id_x 1
  .amdhsa_float_denorm_mode_32 3
  .amdhsa_float_denorm_mode_16_64 3
.end_amdhsa_kernel
"""

if __name__ == "__main__":
    ap = argparse.ArgumentParser()
    ap.add_argument("-o", default="k.s")
    ap.add_argument("--stop", type=int, default=99)
    ap.add_argument("--profile", action="store_true")
    ap.add_argument("--dump", default=None)
    ap.add_argument("--norot", action="store_true")
    ap.add_argument("--nofast", action="store_true")
    ap.add_argument("--ticks", default=None)
    ap.add_argument("--opt", action="append", default=[])
    a = ap.parse_args()
    opts = {}
    for o in a.opt:
        k, v = o.split("="); opts[k] = int(v)
    dbg = a.profile or a.dump
    g = Gen(stop=a.stop, profile=a.profile, dump=a.dump, norot=a.norot, ticks=a.ticks.split(',') if a.ticks else None,
            ws_size=0x4000000 if dbg else 0x400000, fast=not a.nofast, opts=opts)
    P = g.build()
    body, nn = P.render()
    open(a.o, "w").write(HEADER + body + FOOTER)
    print("nops inserted:", nn, "dump info:", g.dumpinfo, "stamps:", ",".join(g.stampnames))
```

```python
import sys, argparse
from asmlib import Prog
from asmlib2 import S, emit, weave, weave_frac, is_mfma

NAME = "standalone__linear_kernel_hedgehog__prompt"

R0 = 0
R1 = 51200
XR = 102400
PHI = 102400
WO = 51200
WP = 153600
ZR = WP + 2048
KVT = 157696
BV = 122880
DUM = 161792
LDS_SIZE = 163840

PART = 0
PS = 3584
OBUF = 0x100000
DBG0 = 0x400000
STAMPS = 0x3E00000
OOB = 0x7f000000
FLAG = 0xF0000
EPOCH = 0xF8000
FLAG2 = 0xF1000

S_X, S_WK, S_WV, S_WQ, S_PHI, S_WO, S_OUT, S_DBG, S_WS = 4, 8, 12, 16, 20, 24, 28, 32, 36
sWAVE, sTB, sPJ, sROT, sTB3, sCB, sGRP = 40, 41, 42, 43, 44, 45, 46
sFAST = 3
sT0, sT1, sT2, sT3, sT4, sT5 = 48, 49, 50, 51, 52, 53
sXW = 54; sL2E = 55; sCNT = 56; sFLAGV = 57; sTAG = 62; sEPN = 61
sM = 58; sM2 = 96; sONE = 0
sKA = 84
sXO = 64
sWOFS = 74
sW1280 = 47
sSO = 63
NSTAMP = 8
def stamp_reg(i): return 98 if i == 0 else 84 + 2 * (i - 1)
SPIN_MAX = 20000

def srd(s): return f"s[{s}:{s+3}]"

class Gen:
    vLANE = 1
    vXD = 2
    vWD = 6
    vWOD = 8
    vBVW, vBVR, vSTW, vSTW2, vSTR = 10, 11, 12, 13, 14
    vXA0, vXA1 = 16, 17
    vP0, vP2, vPV, vP2V = 18, 19, 20, 21
    vG, vN = 22, 23
    vPKW, vPKR, vDW, vRED, vPST, vH1, vFLG, vKVW = 24, 25, 26, 27, 28, 29, 30, 31
    vSEL = 32
    vOA, vOB, vOC, vOS1, vOS2, vWOA, vOF, vOF2, vEXW, vEXR, vOUT, vS1, vS2 = 36, 37, 38, 39, 40, 41, 42, 43, 44, 45, 46, 47, 48
    vFL = 52
    vSM = 50
    vBAD = 51
    vT = 56
    vF2W, vF2V = 240, 241
    vTCH, vTCD = 242, 243
    vSENT = 244
    vACC = 64
    vAF = 88
    vB1 = 136
    vPP = 148
    vE = 168
    vPHI = 208
    vF = 136
    vO = 228
    aX = 0
    aF = 160
    aH = 0

    def __init__(self, stop=99, profile=False, dump=None, norot=False, ticks=None, ws_size=0x400000, fast=True, opts=None):
        self.P = Prog()
        self.stop = stop; self.profile = profile; self.dump = dump; self.norot = norot; self.ticks = ticks
        self.nstamp = 0; self.dumpinfo = []; self.dump_base = DBG0; self.stampnames = []
        self.ws_size = ws_size; self.fast = fast
        self.opts = opts or {}

    def tick_op(self, name):
        if not self.profile: return []
        if self.ticks is None:
            if not (name.startswith("S_") or name == "start"): return []
        elif not any(name.startswith(t) for t in self.ticks): return []
        if self.nstamp >= NSTAMP - 1: return []
        ins = "s_memtime" if self.ticks is not None else "s_memrealtime"
        r = stamp_reg(self.nstamp)
        ops = [("i", f"{ins} s[{r}:{r+1}]")]
        self.stampnames.append(name); self.nstamp += 1
        return ops
    def tick(self, s, name):
        s.append(("call", lambda n=name: emit(self.P, self.tick_op(n))))
    def stamp(self, s, name):
        self.tick(s, "S_" + name)

    def dump_regs(self, regs, name):
        s = S()
        n = len(regs); stride = n * 256
        base = self.dump_base
        self.dumpinfo.append((name, base, n))
        self.dump_base += 1024 * stride
        assert self.dump_base <= STAMPS, "dump overflow"
        s.lg0()
        s.i("s_nop 7\ns_nop 7")
        s.i(f"s_lshl_b32 s{sT0}, s2, 2")
        s.i(f"s_add_u32 s{sT0}, s{sT0}, s{sWAVE}")
        s.i(f"s_mul_i32 s{sT0}, s{sT0}, {stride}")
        s.i(f"s_add_u32 s{sT0}, s{sT0}, {base}")
        s.i(f"v_lshlrev_b32 v255, 2, v{self.vLANE}")
        for i, r in enumerate(regs):
            if r.startswith("a"):
                s.i(f"v_accvgpr_read_b32 v254, {r}"); src = "v254"
            else: src = r
            s.i(f"s_add_u32 s{sT1}, s{sT0}, {i*256}")
            s.vm(f"buffer_store_dword {src}, v255, {srd(S_WS)}, s{sT1} offen", "dump")
            s.i("s_nop 1")
        s.vm0()
        return s

    def build(self):
        steps = [self.prologue, self.phaseK, lambda: self.epiFeat("K"), self.phaseV, self.kv, self.phaseQ,
                 lambda: self.epiFeat("Q"), self.hop1, self.ocomp, self.p3]
        for i, st in enumerate(steps):
            if self.stop >= i: emit(self.P, st())
        self.finish()
        return self.P

    def xfrag(self, tt, ks):
        b = self.aX + (ks * 2 + tt) * 4
        return f"a[{b}:{b+3}]"

    def dma_x(self, lb):
        gs = []
        slot = (lb % 3) * 4096
        for tt in range(2):
            for q in range(2):
                g = S()
                g.i(f"s_add_u32 m0, s{sXW}, {slot + tt*2048 + q*1024}")
                g.vm(f"buffer_load_dwordx4 v{self.vXD+tt*2+q}, {srd(S_X)}, s{sXO+lb} offen lds", f"x{lb}")
                gs.append(g)
        return gs
    def dma_w(self, part, lb):
        base = {"K": R0, "V": R1, "Q": R0}[part]
        sr = {"K": S_WK, "V": S_WV, "Q": S_WQ}[part]
        if self.opts.get("nodma") and part != "K": return []
        A = S(); B = S()
        A.i(f"s_add_u32 m0, s{sW1280}, {base + lb*5120}")
        A.vm(f"buffer_load_dwordx4 v{self.vWD}, {srd(sr)}, s{sWOFS+lb} offen lds", f"W{part}{lb}")
        B.i(f"s_add_u32 m0, s{sW1280}, {base + lb*5120 + 1024}")
        B.i("s_mov_b64 exec, 0xffff")
        B.vm(f"buffer_load_dwordx4 v{self.vWD+1}, {srd(sr)}, s{sWOFS+lb} offen lds", f"W{part}{lb}")
        B.i("s_mov_b64 exec, -1")
        return [A, B]
    def dma_wo(self, ks, tag):
        if self.opts.get("nodma"): return []
        A = S(); B = S()
        A.i(f"s_mov_b32 s{sSO}, {ks*40960}")
        A.i(f"s_add_u32 m0, s{sW1280}, {WO + ks*5120}")
        A.vm(f"buffer_load_dwordx4 v{self.vWOD}, {srd(S_WO)}, s{sSO} offen lds", tag)
        B.i(f"s_add_u32 m0, s{sW1280}, {WO + ks*5120 + 1024}")
        B.i("s_mov_b64 exec, 0xffff")
        B.vm(f"buffer_load_dwordx4 v{self.vWOD+1}, {srd(S_WO)}, s{sSO} offen lds", tag)
        B.i("s_mov_b64 exec, -1")
        return [A, B]

    def prologue(self):
        s = S()
        s.i("s_cmp_ge_u32 s2, 256")
        s.i("s_cbranch_scc1 L_end")
        if self.profile:
            ins = "s_memtime" if self.ticks is not None else "s_memrealtime"
            s.i(f"{ins} s[98:99]"); self.stampnames.append("start"); self.nstamp = 1
        s.i(f"s_load_dwordx8 s[{sKA}:{sKA+7}], s[0:1], 0")
        s.i(f"s_load_dwordx4 s[{sKA+8}:{sKA+11}], s[0:1], 32")
        s.i(f"s_load_dwordx2 s[{sKA+12}:{sKA+13}], s[0:1], 48")
        L = self.vLANE
        s.i(f"v_and_b32 v{L}, 63, v0")
        s.i(f"v_lshrrev_b32 v{self.vT}, 6, v0")
        s.i(f"v_readfirstlane_b32 s{sWAVE}, v{self.vT}")
        s.i(f"s_and_b32 s{sGRP}, s2, 7")
        s.i(f"s_lshr_b32 s{sT1}, s2, 3")
        if self.opts.get("map", 0) == 0:
            s.i(f"s_lshr_b32 s{sT2}, s{sT1}, 4")
            s.i(f"s_lshl_b32 s{sTB}, s{sGRP}, 1")
            s.i(f"s_add_u32 s{sTB}, s{sTB}, s{sT2}")
            s.i(f"s_and_b32 s{sPJ}, s{sT1}, 15")
        else:
            s.i(f"s_lshr_b32 s{sT2}, s{sT1}, 3")
            s.i(f"s_lshr_b32 s{sTB}, s{sGRP}, 1")
            s.i(f"s_lshl_b32 s{sTB}, s{sTB}, 2")
            s.i(f"s_add_u32 s{sTB}, s{sTB}, s{sT2}")
            s.i(f"s_and_b32 s{sPJ}, s{sGRP}, 1")
            s.i(f"s_lshl_b32 s{sPJ}, s{sPJ}, 3")
            s.i(f"s_and_b32 s{sT3}, s{sT1}, 7")
            s.i(f"s_add_u32 s{sPJ}, s{sPJ}, s{sT3}")
        s.i(f"s_and_b32 s{sCB}, s{sT1}, 7")
        s.i(f"s_lshr_b32 s{sT3}, s{sT1}, 3")
        s.i(f"s_lshl_b32 s{sTB3}, s{sGRP}, 2")
        s.i(f"s_add_u32 s{sTB3}, s{sTB3}, s{sT3}")
        if self.opts.get("map", 0) == 0:
            m = self.opts.get("rotm", 3)
            s.i(f"s_mul_i32 s{sROT}, s{sPJ}, {m}")
            s.i(f"s_mul_i32 s{sT2}, s{sT2}, 5")
            s.i(f"s_add_u32 s{sROT}, s{sROT}, s{sT2}")
            xm = self.opts.get("xrot", 3)
            if xm:
                s.i(f"s_mul_i32 s{sT2}, s{sGRP}, {xm}")
                s.i(f"s_add_u32 s{sROT}, s{sROT}, s{sT2}")
            s.i(f"s_mul_i32 s{sT1}, s{sROT}, 52429")
            s.i(f"s_lshr_b32 s{sT1}, s{sT1}, 19")
            s.i(f"s_mul_i32 s{sT1}, s{sT1}, 10")
            s.i(f"s_sub_u32 s{sROT}, s{sROT}, s{sT1}")
        else:
            s.i(f"s_mul_i32 s{sROT}, s{sCB}, 5")
            s.i(f"s_mul_i32 s{sT2}, s{sT2}, 10")
            s.i(f"s_add_u32 s{sROT}, s{sROT}, s{sT2}")
            s.i(f"s_lshr_b32 s{sROT}, s{sROT}, 2")
        s.i(f"s_cmp_ge_u32 s{sROT}, 10")
        s.i(f"s_cselect_b32 s{sT1}, 10, 0")
        s.i(f"s_sub_u32 s{sROT}, s{sROT}, s{sT1}")
        if self.norot: s.i(f"s_mov_b32 s{sROT}, 0")
        t0, t1, t2, t3 = self.vT, self.vT + 1, self.vT + 2, self.vT + 3
        XD = self.vXD
        s.i(f"v_lshrrev_b32 v{t0}, 3, v{L}")
        s.i(f"v_and_b32 v{t1}, 7, v{L}")
        s.i(f"v_lshrrev_b32 v{t2}, 1, v{t0}")
        s.i(f"v_xor_b32 v{XD}, v{t1}, v{t2}")
        s.i(f"v_xor_b32 v{XD+1}, 4, v{XD}")
        s.i(f"v_lshlrev_b32 v{XD}, 4, v{XD}")
        s.i(f"v_lshlrev_b32 v{XD+1}, 4, v{XD+1}")
        s.i(f"s_movk_i32 s{sT2}, 1280")
        s.i(f"v_mad_u32_u24 v{XD}, v{t0}, s{sT2}, v{XD}")
        s.i(f"v_add_u32 v{t0}, 8, v{t0}")
        s.i(f"v_mad_u32_u24 v{XD+1}, v{t0}, s{sT2}, v{XD+1}")
        s.i(f"v_add_u32 v{XD+2}, 20480, v{XD}")
        s.i(f"v_add_u32 v{XD+3}, 20480, v{XD+1}")
        s.i(f"s_lshl_b32 s{sT0}, s{sTB}, 2")
        s.i(f"s_add_u32 s{sT0}, s{sT0}, s{sWAVE}")
        s.i(f"s_mul_i32 s{sT4}, s{sT0}, {32*1280}")
        s.i(f"s_mul_i32 s{sXW}, s{sWAVE}, 12288")
        s.i(f"s_add_u32 s{sXW}, s{sXW}, {XR}")
        s.i(f"s_mul_i32 s{sW1280}, s{sWAVE}, 1280")
        s.i(f"s_mul_i32 s{sT5}, s{sPJ}, 80")
        s.i(f"s_lshl_b32 s{sXO}, s{sROT}, 7")
        s.i(f"s_mul_i32 s{sWOFS}, s{sROT}, {64*3840}")
        s.i(f"s_mul_i32 s{sT0}, s{sWAVE}, 80")
        s.i(f"s_movk_i32 s{sT2}, 3840")
        s.i(f"s_mov_b32 s{sT3}, 52429")
        for e in range(2):
            s.i(f"v_add_u32 v{t0}, s{sT0}, v{L}")
            if e: s.i(f"v_add_u32 v{t0}, 64, v{t0}")
            s.i(f"v_mul_u32_u24 v{t1}, s{sT3}, v{t0}")
            s.i(f"v_lshrrev_b32 v{t1}, 18, v{t1}")
            s.i(f"v_mul_u32_u24 v{t2}, 5, v{t1}")
            s.i(f"v_sub_u32 v{t0}, v{t0}, v{t2}")
            s.i(f"v_and_b32 v{t2}, 0x28, v{t1}")
            s.i(f"v_and_b32 v{t3}, 1, v{t1}")
            s.i(f"v_lshl_or_b32 v{t2}, v{t3}, 4, v{t2}")
            s.i(f"v_bfe_u32 v{t3}, v{t1}, 4, 1")
            s.i(f"v_lshl_or_b32 v{t2}, v{t3}, 2, v{t2}")
            s.i(f"v_bfe_u32 v{t3}, v{t1}, 1, 2")
            s.i(f"v_or_b32 v{t2}, v{t2}, v{t3}")
            s.i(f"v_lshlrev_b32 v{t0}, 4, v{t0}")
            s.i(f"v_mad_u32_u24 v{self.vWD+e}, v{t2}, s{sT2}, v{t0}")
        s.i("s_waitcnt lgkmcnt(0)")
        def mk(sd, p, size, off=None):
            if off is None:
                s.i(f"s_mov_b32 s{sd}, s{p}")
                s.i(f"s_and_b32 s{sd+1}, s{p+1}, 0xffff")
                s.i(f"s_mov_b32 s{sd+2}, {size}")
            else:
                reg, const = off
                if const: s.i(f"s_add_u32 s{sT0}, s{reg}, {const}"); r = sT0
                else: r = reg
                s.i(f"s_add_u32 s{sd}, s{p}, s{r}")
                s.i(f"s_addc_u32 s{sd+1}, s{p+1}, 0")
                s.i(f"s_and_b32 s{sd+1}, s{sd+1}, 0xffff")
                s.i(f"s_sub_u32 s{sd+2}, {size}, s{r}")
            s.i(f"s_mov_b32 s{sd+3}, 0x20000")
        s.i(f"s_load_dword s{sEPN}, s[{sKA+12}:{sKA+13}], {EPOCH}")
        mk(S_X, sKA + 0, 2048 * 1280, (sT4, 0))
        for g in self.dma_x(0): s.extend(g)
        mk(S_WK, sKA + 2, 640 * 3840, (sT5, 1280))
        for g in self.dma_w("K", 0): s.extend(g)
        self.tick(s, "P_a")
        for lb in range(1, 10):
            s.i(f"s_add_u32 s{sXO+lb}, s{sXO+lb-1}, 128")
            s.i(f"s_add_u32 s{sWOFS+lb}, s{sWOFS+lb-1}, {64*3840}")
            s.i(f"s_cmp_eq_u32 s{sROT}, {10-lb}")
            s.i(f"s_cselect_b32 s{sXO+lb}, 0, s{sXO+lb}")
            s.i(f"s_cselect_b32 s{sWOFS+lb}, 0, s{sWOFS+lb}")
            if lb == 1:
                for g in self.dma_x(1)[:2]: s.extend(g)
        mk(S_WV, sKA + 2, 640 * 3840, (sT5, 2560))
        mk(S_WQ, sKA + 2, 640 * 3840, (sT5, 0))
        mk(S_PHI, sKA + 4, 25600)
        s.i(f"s_mul_i32 s{sT3}, s{sCB}, 160")
        mk(S_WO, sKA + 6, 640 * 1280, (sT3, 0))
        mk(S_OUT, sKA + 8, 2048 * 1280)
        mk(S_DBG, sKA + 10, 256)
        mk(S_WS, sKA + 12, self.ws_size)
        su = S()
        self.setup_basic(su)
        self.setup2(su)
        self.setup3(su)
        self.wo_offsets(su)
        self.prefill_addr(su)
        if self.opts.get("touch", 1): self.touch_addr(su)
        pf = S()
        self.phi_stage(pf)
        self.prefill(pf)
        dm = self.dma_x(1)[2:] + self.dma_w("K", 1) + self.dma_x(2) + self.dma_w("K", 2)
        su = weave_frac(su, dm, lo=0.15, hi=1.0)
        s.extend(su)
        self.tick(s, "P_b")
        s.extend(pf)
        self.stamp(s, "prologue")
        return s

    def setup_basic(self, s):
        L = self.vLANE
        a, b_, c_, d_ = self.vT, self.vT + 1, self.vT + 2, self.vT + 3
        s.i(f"v_lshrrev_b32 v{self.vG}, 4, v{L}")
        s.i(f"v_and_b32 v{self.vN}, 15, v{L}")
        s.i(f"v_lshrrev_b32 v{a}, 1, v{self.vN}")
        s.i(f"v_xor_b32 v{a}, v{a}, v{self.vG}")
        s.i(f"v_lshlrev_b32 v{a}, 4, v{a}")
        s.i(f"v_lshl_add_u32 v{a}, v{self.vN}, 7, v{a}")
        s.i(f"v_add_u32 v{self.vXA0}, s{sXW}, v{a}")
        s.i(f"v_xor_b32 v{a}, 64, v{a}")
        s.i(f"v_add_u32 v{self.vXA1}, s{sXW}, v{a}")
        s.i(f"v_bfe_u32 v{a}, v{L}, 2, 2")
        s.i(f"v_and_b32 v{b_}, 1, v{self.vG}")
        s.i(f"v_lshl_add_u32 v{a}, v{b_}, 2, v{a}")
        s.i(f"v_lshrrev_b32 v{b_}, 1, v{self.vG}")
        s.i(f"v_lshl_add_u32 v{a}, v{a}, 1, v{b_}")
        s.i(f"v_mul_u32_u24 v{a}, 80, v{a}")
        s.i(f"v_and_b32 v{b_}, 3, v{L}")
        s.i(f"v_and_b32 v{c_}, 1, v{b_}")
        s.i(f"v_lshrrev_b32 v{d_}, 1, v{b_}")
        s.i(f"v_mul_u32_u24 v{d_}, 5, v{d_}")
        s.i(f"v_lshl_add_u32 v{d_}, v{c_}, 1, v{d_}")
        s.i(f"v_lshl_add_u32 v{self.vP0}, v{d_}, 3, v{a}")
        s.i(f"v_xor_b32 v{c_}, 1, v{c_}")
        s.i(f"v_lshl_add_u32 v{self.vP2}, v{c_}, 5, v{self.vP0}")
        s.i(f"v_lshl_add_u32 v{self.vPV}, v{b_}, 3, v{a}")
        s.i(f"v_add_u32 v{self.vPV}, {R1}, v{self.vPV}")
        s.i(f"v_add_u32 v{self.vP2V}, {R1}, v{self.vP2}")
        s.i(f"s_mov_b32 s{sL2E}, 0x3fb8aa3b")
        s.i(f"s_getreg_b32 s{sFLAGV}, hwreg(HW_REG_XCC_ID, 0, 4)")
        s.i("s_waitcnt lgkmcnt(0)")
        s.i(f"s_mul_i32 s{sEPN}, s{sEPN}, 0x9e3779b1")
        s.i(f"s_add_u32 s{sEPN}, s{sEPN}, 0x7f4a7c15")
        s.i(f"s_and_b32 s{sTAG}, s{sEPN}, 0xfffffff0")
        s.i(f"s_or_b32 s{sFLAGV}, s{sFLAGV}, s{sTAG}")

    def phi_stage(self, s):
        a = self.vT
        s.i(f"v_lshlrev_b32 v{a}, 4, v{self.vLANE}")
        s.i(f"s_mul_i32 s{sT0}, s{sPJ}, 1600")
        s.i(f"s_lshl_b32 s{sT1}, s{sWAVE}, 10")
        s.i(f"s_add_u32 s{sT0}, s{sT0}, s{sT1}")
        s.i(f"s_cmp_ge_u32 s{sWAVE}, 2")
        s.i(f"s_cselect_b32 s{sT0}, 0x100000, s{sT0}")
        s.i(f"s_add_u32 m0, s{sT1}, {WP}")
        s.i(f"v_add_u32 v{a}, s{sT0}, v{a}")
        s.vm(f"buffer_load_dwordx4 v{a}, {srd(S_PHI)}, 0 offen lds", "phi")

    def prefill_addr(self, s):
        a, b_, c_ = self.vT, self.vT + 1, self.vT + 2
        s.i(f"s_lshl_b32 s{sT0}, s{sPJ}, 4")
        s.i(f"s_add_u32 s{sT0}, s{sT0}, s{sTB}")
        s.i(f"s_mul_i32 s{sT0}, s{sT0}, {PS}")
        s.i(f"v_lshlrev_b32 v{a}, 4, v0")
        s.i(f"v_add_u32 v{self.vPST}, s{sT0}, v{a}")
        s.i(f"v_mov_b32 v{b_}, {OOB}")
        s.i(f"v_cmp_gt_u32 vcc, 224, v0")
        s.i(f"v_cndmask_b32 v{self.vPST}, v{b_}, v{self.vPST}, vcc")
        for i in range(4): s.i(f"v_mov_b32 v{self.vSENT+i}, -1")
    def touch_addr(self, s):
        a, b_, c_ = self.vT, self.vT + 1, self.vT + 2
        s.i(f"s_mul_i32 s{sT0}, s{sWAVE}, 20")
        s.i(f"v_add_u32 v{a}, s{sT0}, v{self.vLANE}")
        s.i(f"s_movk_i32 s{sT1}, 6554")
        s.i(f"v_mul_u32_u24 v{b_}, s{sT1}, v{a}")
        s.i(f"v_lshrrev_b32 v{b_}, 16, v{b_}")
        s.i(f"v_mul_u32_u24 v{c_}, 10, v{b_}")
        s.i(f"v_sub_u32 v{c_}, v{a}, v{c_}")
        s.i(f"v_lshlrev_b32 v{c_}, 7, v{c_}")
        s.i(f"s_movk_i32 s{sT2}, 0x5000")
        s.i(f"v_mad_u32_u24 v{b_}, v{b_}, s{sT2}, v{c_}")
        s.i(f"s_lshl_b32 s{sT0}, s{sTB}, 3")
        s.i(f"s_mul_i32 s{sT0}, s{sT0}, 20480")
        s.i(f"s_mul_i32 s{sT1}, s{sPJ}, 1280")
        s.i(f"s_add_u32 s{sT0}, s{sT0}, s{sT1}")
        s.i(f"s_add_u32 s{sT0}, s{sT0}, {OBUF}")
        s.i(f"v_add_u32 v{b_}, s{sT0}, v{b_}")
        s.i(f"v_mov_b32 v{c_}, {OOB}")
        s.i(f"v_cmp_gt_u32 vcc, 20, v{self.vLANE}")
        s.i(f"v_cndmask_b32 v{self.vTCH}, v{c_}, v{b_}, vcc")
    def prefill_groups(self):
        s0 = self.vSENT
        gs = [S().vm(f"buffer_store_dwordx4 v[{s0}:{s0+3}], v{self.vPST}, {srd(S_WS)}, 0 offen sc1", "pf")]
        return gs
    def prefill(self, s):
        for g in self.prefill_groups(): s.extend(g)

    def setup2(self, s):
        L = self.vLANE
        a, b_, c_, d_, e_, f_ = [self.vT + i for i in range(6)]
        s.i(f"s_mul_i32 s{sT3}, s{sWAVE}, 5120")
        s.i(f"s_add_u32 s{sT3}, s{sT3}, {PHI}")
        s.i(f"v_and_b32 v{a}, 1, v{self.vG}")
        s.i(f"v_lshl_add_u32 v{a}, v{a}, 4, v{self.vN}")
        s.i(f"v_mul_u32_u24 v{a}, 160, v{a}")
        s.i(f"v_lshrrev_b32 v{b_}, 1, v{self.vG}")
        s.i(f"v_mul_u32_u24 v{b_}, 80, v{b_}")
        s.i(f"v_add3_u32 v{self.vPKW}, v{a}, v{b_}, s{sT3}")
        s.i(f"s_lshr_b32 s{sT2}, s{sWAVE}, 1")
        s.i(f"s_mul_i32 s{sT3}, s{sT2}, 80")
        s.i(f"s_add_u32 s{sT3}, s{sT3}, {PHI}")
        s.i(f"v_bfe_u32 v{a}, v{L}, 2, 2")
        s.i(f"v_lshl_add_u32 v{a}, v{self.vG}, 2, v{a}")
        s.i(f"v_mul_u32_u24 v{a}, 160, v{a}")
        s.i(f"v_and_b32 v{b_}, 3, v{L}")
        s.i(f"v_lshl_add_u32 v{a}, v{b_}, 3, v{a}")
        s.i(f"v_add_u32 v{self.vPKR}, s{sT3}, v{a}")
        s.i(f"v_lshlrev_b32 v{a}, 4, v{L}")
        s.i(f"s_mul_i32 s{sT3}, s{sWAVE}, 3072")
        s.i(f"s_add_u32 s{sT3}, s{sT3}, {BV}")
        s.i(f"v_add_u32 v{self.vBVW}, s{sT3}, v{a}")
        s.i(f"s_and_b32 s{sT1}, s{sWAVE}, 1")
        s.i(f"s_cmp_eq_u32 s{sT1}, 1")
        s.i(f"s_cselect_b32 s{sT3}, 2, s{sT2}")
        s.i(f"s_lshl_b32 s{sT3}, s{sT3}, 10")
        s.i(f"s_add_u32 s{sT3}, s{sT3}, {BV}")
        s.i(f"v_add_u32 v{self.vBVR}, s{sT3}, v{a}")
        s.i(f"v_and_b32 v{b_}, 3, v{self.vN}")
        s.i(f"v_add_u32 v{b_}, 16, v{b_}")
        s.i(f"v_cmp_eq_u32 vcc, 4, v{self.vN}")
        s.i(f"v_cndmask_b32 v{b_}, v{b_}, 20, vcc")
        s.i(f"s_mov_b64 s[{sM}:{sM+1}], vcc")
        s.i(f"v_lshrrev_b32 v{c_}, 2, v{self.vN}")
        s.i(f"s_lshl_b32 s{sT3}, s{sT2}, 1")
        s.i(f"v_cmp_eq_u32 vcc, s{sT3}, v{c_}")
        s.i(f"s_or_b64 s[{sM}:{sM+1}], s[{sM}:{sM+1}], vcc")
        s.i(f"s_cmp_eq_u32 s{sT1}, 1")
        s.i(f"s_cselect_b64 s[{sM}:{sM+1}], s[{sM}:{sM+1}], -1")
        s.i(f"s_cselect_b32 s{sT4}, 1, 0")
        s.i(f"v_cmp_eq_u32 vcc, 1, s{sT4}")
        s.i(f"v_cndmask_b32 v{b_}, v{self.vN}, v{b_}, vcc")
        s.i(f"s_mul_i32 s{sT3}, s{sT2}, 21")
        s.i(f"v_add_u32 v{b_}, s{sT3}, v{b_}")
        s.i(f"v_mul_u32_u24 v{b_}, 80, v{b_}")
        s.i(f"v_lshl_add_u32 v{b_}, v{self.vG}, 3, v{b_}")
        s.i(f"v_add_u32 v{b_}, {KVT}, v{b_}")
        s.i(f"v_lshlrev_b32 v{c_}, 3, v{L}")
        s.i(f"v_add_u32 v{c_}, {DUM}, v{c_}")
        s.i(f"v_cndmask_b32 v{self.vSTW}, v{c_}, v{b_}, s[{sM}:{sM+1}]")
        s.i(f"v_cmp_gt_u32 vcc, 2, v{self.vG}")
        s.i(f"v_cndmask_b32 v{self.vSTW2}, v{c_}, v{self.vSTW}, vcc")
        s.i(f"v_lshlrev_b32 v{a}, 4, v0")
        s.i(f"v_add_u32 v{self.vSTR}, {KVT}, v{a}")
        s.i(f"v_mov_b32 v{b_}, {DUM}")
        s.i(f"v_cmp_gt_u32 vcc, 224, v0")
        s.i(f"v_cndmask_b32 v{self.vSTR}, v{b_}, v{self.vSTR}, vcc")
        s.i(f"s_mul_i32 s{sT0}, s{sPJ}, {16*PS}")
        s.i(f"s_lshl_b32 s{sT1}, s{sWAVE}, 8")
        s.i(f"s_add_u32 s{sT2}, s{sT0}, s{sT1}")
        s.i(f"v_mul_u32_u24 v{a}, {PS}, v{self.vG}")
        s.i(f"v_lshl_add_u32 v{a}, v{self.vN}, 4, v{a}")
        s.i(f"v_add_u32 v{self.vH1}, s{sT2}, v{a}")
        s.i(f"v_lshrrev_b32 v{a}, 2, v{L}")
        s.i(f"v_mul_u32_u24 v{a}, {PS}, v{a}")
        s.i(f"v_and_b32 v{b_}, 3, v{L}")
        s.i(f"v_lshl_add_u32 v{a}, v{b_}, 10, v{a}")
        s.i(f"v_add_u32 v{self.vS1}, s{sT0}, v{a}")
        s.i(f"v_and_b32 v{a}, 1, v{self.vN}")
        s.i(f"v_mov_b32 v{b_}, 0x3f80")
        s.i(f"v_lshlrev_b32 v{a}, 4, v{a}")
        s.i(f"v_lshlrev_b32 v{b_}, v{a}, v{b_}")
        s.i(f"v_lshrrev_b32 v{a}, 1, v{self.vN}")
        for k in range(4):
            s.i(f"v_cmp_eq_u32 vcc, {k}, v{a}")
            s.i(f"v_cndmask_b32 v{self.vSEL+k}, 0, v{b_}, vcc")
        s.i(f"v_lshlrev_b32 v{a}, 4, v{self.vN}")
        s.i(f"v_lshl_add_u32 v{a}, v{self.vG}, 3, v{a}")
        s.i(f"s_add_u32 s{sT1}, s{sT1}, {KVT}")
        s.i(f"v_add_u32 v{self.vKVW}, s{sT1}, v{a}")
        s.i(f"v_lshrrev_b32 v{a}, 2, v{self.vN}")
        s.i(f"v_cmp_eq_u32 s[{sONE}:{sONE+1}], 1, v{a}")
        s.i(f"v_lshlrev_b32 v{self.vFLG}, 4, v{L}")
        s.i(f"v_add_u32 v{self.vFLG}, {FLAG}, v{self.vFLG}")

    def setup3(self, s):
        L = self.vLANE
        a, b_, c_, d_, e_ = [self.vT + i for i in range(5)]
        s.i(f"v_lshrrev_b32 v{a}, 1, v{self.vG}")
        s.i(f"v_mul_u32_u24 v{b_}, 1680, v{a}")
        s.i(f"v_and_b32 v{c_}, 3, v{self.vN}")
        s.i(f"v_mul_u32_u24 v{c_}, 80, v{c_}")
        s.i(f"v_add_u32 v{b_}, v{b_}, v{c_}")
        s.i(f"v_add_u32 v{b_}, {KVT}, v{b_}")
        s.i(f"v_mul_u32_u24 v{c_}, 320, v{a}")
        s.i(f"v_add_u32 v{self.vOA}, v{b_}, v{c_}")
        s.i(f"v_xor_b32 v{c_}, 1, v{a}")
        s.i(f"v_mul_u32_u24 v{c_}, 1280, v{c_}")
        s.i(f"v_add_u32 v{self.vOB}, v{b_}, v{c_}")
        s.i(f"v_add_u32 v{self.vOC}, 1600, v{b_}")
        s.i(f"v_lshrrev_b32 v{c_}, 2, v{self.vN}")
        s.i(f"v_cmp_eq_u32 vcc, v{c_}, v{self.vG}")
        s.i(f"v_mov_b32 v{d_}, {ZR}")
        s.i(f"v_cndmask_b32 v{self.vOA}, v{d_}, v{self.vOA}, vcc")
        s.i(f"v_cndmask_b32 v{self.vOB}, v{d_}, v{self.vOB}, vcc")
        s.i(f"v_cndmask_b32 v{self.vOC}, v{d_}, v{self.vOC}, vcc")
        s.i(f"s_lshl_b32 s{sT0}, s{sTB}, 3")
        s.i(f"s_lshl_b32 s{sT1}, s{sWAVE}, 1")
        s.i(f"s_add_u32 s{sT0}, s{sT0}, s{sT1}")
        s.i(f"s_mul_i32 s{sT0}, s{sT0}, 20480")
        s.i(f"s_mul_i32 s{sT1}, s{sPJ}, 1280")
        s.i(f"s_add_u32 s{sT0}, s{sT0}, s{sT1}")
        s.i(f"s_add_u32 s{sT0}, s{sT0}, {OBUF}")
        s.i(f"v_and_b32 v{b_}, 1, v{self.vG}")
        s.i(f"s_movk_i32 s{sT2}, 0x5000")
        s.i(f"v_mul_u32_u24 v{b_}, s{sT2}, v{b_}")
        s.i(f"v_lshl_add_u32 v{b_}, v{self.vN}, 4, v{b_}")
        s.i(f"v_add_u32 v{b_}, s{sT0}, v{b_}")
        s.i(f"v_mul_u32_u24 v{c_}, 768, v{a}")
        s.i(f"v_add_u32 v{self.vOS1}, v{b_}, v{c_}")
        s.i(f"v_add_u32 v{self.vOS2}, 512, v{b_}")
        s.i(f"v_mov_b32 v{c_}, {OOB}")
        s.i(f"v_cmp_gt_u32 vcc, 32, v{L}")
        s.i(f"v_cndmask_b32 v{self.vOS2}, v{c_}, v{self.vOS2}, vcc")
        s.i(f"s_and_b32 s{sT3}, s{sWAVE}, 1")
        s.i(f"v_bfe_u32 v{a}, v{L}, 2, 2")
        s.i(f"v_lshl_add_u32 v{a}, v{self.vG}, 2, v{a}")
        s.i(f"v_mul_u32_u24 v{a}, 160, v{a}")
        s.i(f"v_and_b32 v{b_}, 3, v{L}")
        s.i(f"v_mul_u32_u24 v{b_}, 40, v{b_}")
        s.i(f"s_mul_i32 s{sT0}, s{sT3}, 51200")
        s.i(f"s_add_u32 s{sT0}, s{sT0}, {WO}")
        s.i(f"v_add3_u32 v{self.vWOA}, v{a}, v{b_}, s{sT0}")
        s.i(f"s_lshl_b32 s{sT0}, s{sTB3}, 2")
        s.i(f"s_add_u32 s{sT1}, s{sT0}, s{sWAVE}")
        s.i(f"s_xor_b32 s{sT2}, s{sWAVE}, 1")
        s.i(f"s_add_u32 s{sT2}, s{sT0}, s{sT2}")
        s.i(f"s_mul_i32 s{sT4}, s{sT3}, 10240")
        s.i(f"s_add_u32 s{sT4}, s{sT4}, {OBUF}")
        s.i(f"s_mul_i32 s{sT0}, s{sT1}, 20480")
        s.i(f"s_add_u32 s{sT0}, s{sT0}, s{sT4}")
        s.i(f"v_lshlrev_b32 v{a}, 4, v{L}")
        s.i(f"v_add_u32 v{self.vOF}, s{sT0}, v{a}")
        s.i(f"s_mul_i32 s{sT0}, s{sT2}, 20480")
        s.i(f"s_add_u32 s{sT0}, s{sT0}, s{sT4}")
        s.i(f"v_add_u32 v{self.vOF2}, s{sT0}, v{a}")
        s.i(f"s_lshr_b32 s{sT0}, s{sTB3}, 1")
        s.i(f"s_and_b32 s{sT4}, s{sT0}, 1")
        s.i(f"s_lshl_b32 s{sT4}, s{sT4}, 4")
        s.i(f"s_lshl_b32 s{sT5}, s{sT3}, 3")
        s.i(f"s_add_u32 s{sT4}, s{sT4}, s{sT5}")
        s.i(f"s_lshl_b32 s{sT4}, s{sT4}, 3")
        s.i(f"s_lshr_b32 s{sT0}, s{sT0}, 1")
        s.i(f"s_add_u32 s{sT4}, s{sT4}, s{sT0}")
        s.i(f"v_and_b32 v{b_}, 7, v{L}")
        s.i(f"v_lshlrev_b32 v{b_}, 3, v{b_}")
        s.i(f"v_add_u32 v{b_}, s{sT4}, v{b_}")
        s.i(f"v_lshlrev_b32 v{b_}, 4, v{b_}")
        s.i(f"s_and_b32 s{sT0}, s{sT1}, 7")
        s.i(f"s_lshr_b32 s{sT0}, s{sT0}, 1")
        s.i(f"s_and_b32 s{sT5}, s{sT2}, 7")
        s.i(f"s_lshr_b32 s{sT5}, s{sT5}, 1")
        s.i(f"v_mov_b32 v{c_}, s{sT0}")
        s.i(f"v_mov_b32 v{d_}, s{sT5}")
        s.i(f"v_bfe_u32 v{e_}, v{L}, 3, 1")
        s.i(f"v_cmp_eq_u32 vcc, 0, v{e_}")
        s.i(f"v_cndmask_b32 v{c_}, v{d_}, v{c_}, vcc")
        s.i(f"v_lshl_add_u32 v{b_}, v{c_}, 2, v{b_}")
        s.i(f"v_add_u32 v{self.vS2}, {FLAG2}, v{b_}")
        s.i(f"s_lshl_b32 s{sT0}, s2, 2")
        s.i(f"s_add_u32 s{sT0}, s{sT0}, s{sWAVE}")
        s.i(f"s_lshl_b32 s{sT0}, s{sT0}, 2")
        s.i(f"s_add_u32 s{sT0}, s{sT0}, {FLAG2}")
        s.i(f"v_mov_b32 v{self.vF2W}, s{sT0}")
        s.i(f"v_mov_b32 v{self.vF2V}, s{sTAG}")
        s.i(f"s_mul_i32 s{sT0}, s{sWAVE}, 5120")
        s.i(f"v_add_u32 v{self.vEXW}, s{sT0}, v{a}")
        s.i(f"s_xor_b32 s{sT0}, s{sWAVE}, 1")
        s.i(f"s_mul_i32 s{sT0}, s{sT0}, 5120")
        s.i(f"v_add_u32 v{self.vEXR}, s{sT0}, v{a}")
        s.i(f"s_lshl_b32 s{sT1}, s{sT1}, 4")
        s.i(f"v_add_u32 v{a}, s{sT1}, v{self.vN}")
        s.i(f"s_movk_i32 s{sT2}, 1280")
        s.i(f"v_mul_u32_u24 v{a}, s{sT2}, v{a}")
        s.i(f"v_mul_u32_u24 v{b_}, 40, v{self.vG}")
        s.i(f"s_mul_i32 s{sT0}, s{sCB}, 160")
        s.i(f"v_add3_u32 v{self.vOUT}, v{a}, v{b_}, s{sT0}")

    def wo_offsets(self, s):
        a, b_, c_, d_ = [self.vT + i for i in range(4)]
        s.i(f"s_movk_i32 s{sT2}, 1280")
        s.i(f"s_mov_b32 s{sT3}, 52429")
        s.i(f"s_mul_i32 s{sT0}, s{sWAVE}, 80")
        for e in range(2):
            s.i(f"v_add_u32 v{a}, s{sT0}, v{self.vLANE}")
            if e: s.i(f"v_add_u32 v{a}, 64, v{a}")
            s.i(f"v_lshrrev_b32 v{b_}, 1, v{a}")
            s.i(f"v_mul_u32_u24 v{b_}, s{sT3}, v{b_}")
            s.i(f"v_lshrrev_b32 v{b_}, 18, v{b_}")
            s.i(f"v_mul_u32_u24 v{c_}, 10, v{b_}")
            s.i(f"v_sub_u32 v{a}, v{a}, v{c_}")
            s.i(f"v_and_b32 v{c_}, 12, v{b_}")
            s.i(f"v_lshlrev_b32 v{c_}, 1, v{c_}")
            s.i(f"v_lshrrev_b32 v{d_}, 4, v{b_}")
            s.i(f"v_lshl_or_b32 v{c_}, v{d_}, 2, v{c_}")
            s.i(f"v_and_b32 v{d_}, 3, v{b_}")
            s.i(f"v_or_b32 v{c_}, v{c_}, v{d_}")
            s.i(f"v_lshlrev_b32 v{a}, 4, v{a}")
            s.i(f"v_mad_u32_u24 v{self.vWOD+e}, v{c_}, s{sT2}, v{a}")

    def frag_reads(self, part, ks, buf, tag):
        out = []
        r = self.vAF + buf * 12
        for t in range(3):
            if part == "V":
                va = self.vPV if t < 2 else self.vP2V
                off = ks * 2560 + (40 * t if t < 2 else 0)
            else:
                va = self.vP0 if t < 2 else self.vP2
                off = R0 + ks * 2560 + (8 * t if t < 2 else 0)
            out.append(S().lds(f"ds_read_b64_tr_b16 v[{r+4*t}:{r+4*t+1}], v{va} offset:{off}", tag))
            out.append(S().lds(f"ds_read_b64_tr_b16 v[{r+4*t+2}:{r+4*t+3}], v{va} offset:{off+1280}", tag))
        return out
    def acc(self, tt, t):
        b = self.vACC + (tt * 3 + t) * 4
        return f"v[{b}:{b+3}]"
    def mfmas(self, ks, buf, first, orient):
        s = S()
        r = self.vAF + buf * 12
        for t in range(3):
            for tt in range(2):
                w = f"v[{r+4*t}:{r+4*t+3}]"
                x = self.xfrag(tt, ks)
                c = "0" if first else self.acc(tt, t)
                if orient == "T": s.i(f"v_mfma_f32_16x16x32_bf16 {self.acc(tt,t)}, {w}, {x}, {c}")
                else:             s.i(f"v_mfma_f32_16x16x32_bf16 {self.acc(tt,t)}, {x}, {w}, {c}")
        return s

    def k_reads(self, lb):
        out = []
        slot = (lb % 3) * 4096
        for ksl in range(2):
            ks = 2 * lb + ksl
            va = self.vXA0 if ksl == 0 else self.vXA1
            for tt in range(2):
                out.append(S().lds(f"ds_read_b128 {self.xfrag(tt,ks)}, v{va} offset:{slot + tt*2048}", f"kr{lb}"))
            out += self.frag_reads("K", ks, (2 * lb + ksl) % 4, f"kr{lb}")
        return out

    def phaseK(self):
        s = S()
        s.c("---- phase K ----")
        def ready(lb):
            tags = [f"x{lb}", f"WK{lb}"]
            if lb == 3: tags += ["phi"]
            if lb == 6: tags += ["pf"]
            self.tick(s, f"K{lb}_a")
            s.vmw(*tags)
            s.bar()
            self.tick(s, f"K{lb}_b")
        ready(0)
        for g in self.k_reads(0): s.extend(g)
        for lb in range(10):
            nxt = []
            if lb + 1 < 10:
                ready(lb + 1)
                nxt = self.k_reads(lb + 1)
            dm = []
            if lb + 3 < 10: dm = self.dma_x(lb + 3) + self.dma_w("K", lb + 3)
            else: dm = self.dma_w("V", lb - 7)
            m = S()
            m.lgw(f"kr{lb}")
            m.extend(self.mfmas(2 * lb, (2 * lb) % 4, lb == 0, "T"))
            m.extend(self.mfmas(2 * lb + 1, (2 * lb + 1) % 4, False, "T"))
            merged = S()
            gi = 0; di = 0; nm = 0
            for op in m:
                merged.append(op)
                if is_mfma(op):
                    nm += 1
                    k = 2 if gi < 8 else 1
                    for _ in range(k):
                        if gi < len(nxt): merged.extend(nxt[gi]); gi += 1
                    if nm % 2 == 0 and di < len(dm): merged.extend(dm[di]); di += 1
            while gi < len(nxt): merged.extend(nxt[gi]); gi += 1
            while di < len(dm): merged.extend(dm[di]); di += 1
            s.extend(merged)
            if lb == 3:
                self.fmap_consts(s)
        s.bar()
        self.stamp(s, "Kgemm")
        if self.dump == "K":
            s.extend(self.dump_regs([f"v{self.vACC+i}" for i in range(24)], "accK"))
            s.extend(self.dump_regs([f"a{self.aF+i}" for i in range(60)], "fc"))
        return s

    def publish_flag(self, s):
        a, b_ = self.vT + 6, self.vT + 7
        s.i(f"s_cmp_lg_u32 s{sWAVE}, 0")
        s.i("s_cbranch_scc1 L_noflag")
        s.i(f"s_lshl_b32 s{sT0}, s2, 2")
        s.i(f"s_add_u32 s{sT0}, s{sT0}, {FLAG}")
        s.i(f"v_mov_b32 v{a}, s{sT0}")
        s.i(f"v_mov_b32 v{b_}, s{sFLAGV}")
        s.i("s_mov_b64 exec, 1")
        s.vm(f"buffer_store_dword v{b_}, v{a}, {srd(S_WS)}, 0 offen sc1", "flag", True)
        s.i("s_mov_b64 exec, -1")
        s.i("L_noflag:")

    def flags_check(self, s):
        t = self.vT + 4
        F = self.vFL
        s.i(f"s_mov_b32 s{sCNT}, 0")
        s.vmw("fl")
        s.i("L_fl_check:")
        s.i(f"v_and_b32 v{t}, v{F}, v{F+1}")
        s.i(f"v_and_b32 v{t+1}, v{F+2}, v{F+3}")
        s.i(f"v_or_b32 v{t+2}, v{F}, v{F+1}")
        s.i(f"v_or_b32 v{t+3}, v{F+2}, v{F+3}")
        s.i(f"v_and_b32 v{t}, v{t}, v{t+1}")
        s.i(f"v_or_b32 v{t+2}, v{t+2}, v{t+3}")
        s.i(f"v_xor_b32 v{t}, s{sTAG}, v{t}")
        s.i(f"v_xor_b32 v{t+2}, s{sTAG}, v{t+2}")
        s.i(f"v_or_b32 v{t}, v{t}, v{t+2}")
        s.i(f"v_cmp_lt_u32 vcc, 15, v{t}")
        s.i("s_nop 1")
        s.i(f"s_or_b32 s{sM}, vcc_lo, vcc_hi")
        s.i(f"s_cmp_eq_u32 s{sM}, 0")
        s.i("s_cbranch_scc1 L_fl_ok")
        s.i(f"s_add_u32 s{sCNT}, s{sCNT}, 1")
        s.i(f"s_cmp_gt_u32 s{sCNT}, {SPIN_MAX}")
        s.i("s_cbranch_scc1 L_fl_ok")
        s.i(f"buffer_load_dwordx4 v[{F}:{F+3}], v{self.vFLG}, {srd(S_WS)}, 0 offen sc1")
        s.i("s_waitcnt vmcnt(0)")
        s.i("s_branch L_fl_check")
        s.i("L_fl_ok:")
        s.i(f"s_and_b32 s{sT0}, s{sGRP}, 3")
        s.i(f"s_cmp_eq_u32 s{sT0}, 1")
        s.i(f"s_cselect_b64 vcc, -1, 0")
        s.i(f"v_cndmask_b32 v{t}, v{F}, v{F+1}, vcc")
        s.i(f"s_cmp_eq_u32 s{sT0}, 2")
        s.i(f"s_cselect_b64 vcc, -1, 0")
        s.i(f"v_cndmask_b32 v{t}, v{t}, v{F+2}, vcc")
        s.i(f"s_cmp_eq_u32 s{sT0}, 3")
        s.i(f"s_cselect_b64 vcc, -1, 0")
        s.i(f"v_cndmask_b32 v{t}, v{t}, v{F+3}, vcc")
        s.i(f"v_cmp_ne_u32 vcc, s{sFLAGV}, v{t}")
        s.i(f"s_lshr_b32 s{sT1}, s{sGRP}, 2")
        s.i(f"s_mov_b32 s{sT2}, 0x55555555")
        s.i(f"s_lshl_b32 s{sT2}, s{sT2}, s{sT1}")
        s.i(f"s_or_b32 s{sT3}, vcc_lo, vcc_hi")
        s.i(f"s_and_b32 s{sT3}, s{sT3}, s{sT2}")
        s.i(f"s_cmp_eq_u32 s{sT3}, 0")
        s.i(f"s_cselect_b32 s{sFAST}, 1, 0")

    def fmap_consts(self, s):
        L = self.vLANE
        a, b_, c_, d_ = self.vT, self.vT + 1, self.vT + 2, self.vT + 3
        A0, A1, X0, X1 = self.vT + 4, self.vT + 5, self.vT + 6, self.vT + 7
        s.i(f"v_bfe_u32 v{a}, v{L}, 2, 2")
        s.i(f"v_and_b32 v{b_}, 3, v{L}")
        s.i(f"v_lshrrev_b32 v{c_}, 1, v{self.vG}")
        s.i(f"v_mul_u32_u24 v{d_}, 800, v{c_}")
        s.i(f"v_mul_u32_u24 v{a}, 40, v{a}")
        s.i(f"v_add_u32 v{d_}, v{d_}, v{a}")
        s.i(f"v_add_u32 v{d_}, {WP}, v{d_}")
        s.i(f"v_and_b32 v{a}, 1, v{self.vG}")
        s.i(f"v_mul_u32_u24 v{A0}, 320, v{a}")
        s.i(f"v_add_u32 v{A0}, v{A0}, v{d_}")
        s.i(f"v_add_u32 v{X0}, 640, v{d_}")
        s.i(f"v_mov_b32 v{A1}, {ZR}")
        s.i(f"v_lshrrev_b32 v{d_}, 1, v{b_}")
        s.i(f"v_cmp_eq_u32 s[{sM}:{sM+1}], v{d_}, v{c_}")
        s.i(f"v_and_b32 v{d_}, 1, v{b_}")
        s.i(f"v_cmp_eq_u32 s[{sM2}:{sM2+1}], 0, v{d_}")
        s.i(f"v_cmp_eq_u32 vcc, 0, v{a}")
        s.i(f"s_and_b64 s[{sT0}:{sT0+1}], s[{sM}:{sM+1}], s[{sM2}:{sM2+1}]")
        s.i(f"s_andn2_b64 s[{sT2}:{sT2+1}], s[{sM}:{sM+1}], s[{sM2}:{sM2+1}]")
        s.i(f"s_and_b64 s[{sM}:{sM+1}], s[{sT0}:{sT0+1}], vcc")
        s.i(f"s_and_b64 s[{sM2}:{sM2+1}], s[{sT2}:{sT2+1}], vcc")
        s.i("s_nop 1")
        s.i(f"v_cndmask_b32 v{a}, v{A1}, v{A0}, s[{sT2}:{sT2+1}]")
        s.i(f"v_cndmask_b32 v{A0}, v{A1}, v{A0}, s[{sT0}:{sT0+1}]")
        s.i(f"v_cndmask_b32 v{X1}, v{A1}, v{X0}, s[{sM2}:{sM2+1}]")
        s.i(f"v_cndmask_b32 v{X0}, v{A1}, v{X0}, s[{sM}:{sM+1}]")
        s.i(f"v_mov_b32 v{A1}, v{a}")
        for t in range(5):
            f = self.aF + t * 12
            s.lds(f"ds_read_b64_tr_b16 a[{f}:{f+1}], v{A0} offset:{8*t}", "fc")
            s.lds(f"ds_read_b64_tr_b16 a[{f+2}:{f+3}], v{A0} offset:{8*t+160}", "fc")
            s.lds(f"ds_read_b64_tr_b16 a[{f+4}:{f+5}], v{A1} offset:{8*t}", "fc")
            s.lds(f"ds_read_b64_tr_b16 a[{f+6}:{f+7}], v{A1} offset:{8*t+160}", "fc")
            s.lds(f"ds_read_b64_tr_b16 a[{f+8}:{f+9}], v{X0} offset:{8*t}", "fc")
            s.lds(f"ds_read_b64_tr_b16 a[{f+10}:{f+11}], v{X1} offset:{8*t}", "fc")

    def epi_body(self, which):
        s = S()
        B = self.vB1; PP = self.vPP; E = self.vE
        def A(tt, t, r): return self.vACC + (tt * 3 + t) * 4 + r
        if which == "K": s.lgw("fc")
        for tt in range(2):
            for t in range(2):
                s.i(f"v_cvt_pk_bf16_f32 v{B+4*tt+2*t}, v{A(tt,t,0)}, v{A(tt,t,1)}")
                s.i(f"v_cvt_pk_bf16_f32 v{B+4*tt+2*t+1}, v{A(tt,t,2)}, v{A(tt,t,3)}")
        for tt in range(2):
            s.i(f"v_cvt_pk_bf16_f32 v{B+8+2*tt}, v{A(tt,2,0)}, v{A(tt,2,1)}")
            s.i(f"v_cvt_pk_bf16_f32 v{B+8+2*tt+1}, v{A(tt,2,2)}, v{A(tt,2,3)}")
        for j in range(3):
            for t in range(5):
                f = self.aF + t * 12 + 4 * j
                c = "0" if j == 0 else f"v[{PP+4*t}:{PP+4*t+3}]"
                s.i(f"v_mfma_f32_16x16x32_bf16 v[{PP+4*t}:{PP+4*t+3}], a[{f}:{f+3}], v[{B+4*j}:{B+4*j+3}], {c}")
        if self.dump == "P" + which:
            s.extend(self.dump_regs([f"v{PP+i}" for i in range(20)], "P" + which))
        prefix = s
        s = S()
        mx, mn, sp, sn = self.vT, self.vT + 2, self.vT + 4, self.vT + 6
        s.i(f"v_max3_f32 v{mx}, v{PP}, v{PP+1}, v{PP+2}")
        s.i(f"v_min3_f32 v{mn}, v{PP}, v{PP+1}, v{PP+2}")
        for i in range(3, 19, 2):
            s.i(f"v_max3_f32 v{mx}, v{mx}, v{PP+i}, v{PP+i+1}")
            s.i(f"v_min3_f32 v{mn}, v{mn}, v{PP+i}, v{PP+i+1}")
        s.i(f"v_max_f32 v{mx}, v{mx}, v{PP+19}")
        s.i(f"v_min_f32 v{mn}, v{mn}, v{PP+19}")
        s.i(f"v_mul_f32 v{mx}, s{sL2E}, v{mx}")
        s.i(f"v_mul_f32 v{mn}, s{sL2E}, v{mn}")
        pk = self.opts.get("pk" + which, 1)
        if pk:
            s.i(f"s_mov_b32 s{sT0}, s{sL2E}")
            s.i(f"s_mov_b32 s{sT0+1}, s{sL2E}")
            for i in range(0, 20, 2):
                s.i(f"v_pk_fma_f32 v[{E+i}:{E+i+1}], v[{PP+i}:{PP+i+1}], s[{sT0}:{sT0+1}], v[{mx}:{mx+1}] op_sel_hi:[1,1,0] neg_lo:[0,0,1] neg_hi:[0,0,1]")
                s.i(f"v_pk_fma_f32 v[{E+20+i}:{E+20+i+1}], v[{PP+i}:{PP+i+1}], s[{sT0}:{sT0+1}], v[{mn}:{mn+1}] op_sel_hi:[1,1,0] neg_lo:[1,0,0] neg_hi:[1,0,0]")
        else:
            for i in range(20):
                s.i(f"v_fma_f32 v{E+i}, v{PP+i}, s{sL2E}, -v{mx}")
                s.i(f"v_fma_f32 v{E+20+i}, -v{PP+i}, s{sL2E}, v{mn}")
        for i in range(40): s.i(f"v_exp_f32 v{E+i}, v{E+i}")
        if pk:
            s.i(f"v_pk_add_f32 v[{sp}:{sp+1}], v[{E}:{E+1}], v[{E+2}:{E+3}]")
            s.i(f"v_pk_add_f32 v[{sn}:{sn+1}], v[{E+20}:{E+21}], v[{E+22}:{E+23}]")
            for i in range(4, 20, 2):
                s.i(f"v_pk_add_f32 v[{sp}:{sp+1}], v[{sp}:{sp+1}], v[{E+i}:{E+i+1}]")
                s.i(f"v_pk_add_f32 v[{sn}:{sn+1}], v[{sn}:{sn+1}], v[{E+20+i}:{E+20+i+1}]")
            s.i(f"v_add_f32 v{sp}, v{sp}, v{sp+1}")
            s.i(f"v_add_f32 v{sn}, v{sn}, v{sn+1}")
        else:
            s.i(f"v_add_f32 v{sp}, v{E}, v{E+1}")
            s.i(f"v_add_f32 v{sn}, v{E+20}, v{E+21}")
            for i in range(2, 20):
                s.i(f"v_add_f32 v{sp}, v{sp}, v{E+i}")
                s.i(f"v_add_f32 v{sn}, v{sn}, v{E+20+i}")
        s.i(f"v_rcp_f32 v{sp}, v{sp}")
        s.i(f"v_rcp_f32 v{sn}, v{sn}")
        if pk:
            for i in range(0, 20, 2):
                s.i(f"v_pk_mul_f32 v[{E+i}:{E+i+1}], v[{E+i}:{E+i+1}], v[{sp}:{sp+1}] op_sel_hi:[1,0]")
                s.i(f"v_pk_mul_f32 v[{E+20+i}:{E+20+i+1}], v[{E+20+i}:{E+20+i+1}], v[{sn}:{sn+1}] op_sel_hi:[1,0]")
        else:
            for i in range(20):
                s.i(f"v_mul_f32 v{E+i}, v{E+i}, v{sp}")
                s.i(f"v_mul_f32 v{E+20+i}, v{E+20+i}, v{sn}")
        for i in range(20):
            s.i(f"v_cvt_pk_bf16_f32 v{self.vPHI+i}, v{E+2*i}, v{E+2*i+1}")
            if which == "K" and i % 4 == 3:
                j = i // 4
                s.lds(f"ds_write_b128 v{self.vPKW}, v[{self.vPHI+4*j}:{self.vPHI+4*j+3}] offset:{16*j}", "pkw")
        return prefix, s

    def epiFeat(self, which):
        s = S(); s.c(f"---- feature epilogue {which} ----")
        prefix, rest = self.epi_body(which)
        if which == "K":
            self.publish_flag(s)
            bg = self.dma_w("V", 3)
            if self.opts.get("touch", 1):
                bg.append(S().vm(f"buffer_load_dword v{self.vTCD}, v{self.vTCH}, {srd(S_WS)}, 0 offen", "tch"))
            if self.opts.get("weaveKV", 1) and self.stop >= 3 and not self.dump:
                s.extend(weave_frac(prefix, bg, lo=0.3, hi=0.95))
                self.filler_V = rest
            else:
                body = S(prefix); body.extend(rest)
                s.extend(weave_frac(body, bg + self.dma_w("V", 4) + self.dma_w("V", 5), lo=0.05, hi=0.95))
                self.filler_V = None
        else:
            body = S(prefix); body.extend(rest)
            s.extend(weave_frac(body, self.bg_qe, lo=0.05, hi=0.95))
        self.stamp(s, "epi" + which)
        if self.dump == "PHI" + which:
            s.extend(self.dump_regs([f"v{self.vPHI+i}" for i in range(20)], "PHI" + which))
        return s

    def gemm_resident(self, part, plan, waits=(0, 6, 12, 16), filler=None, per_slot=2, pre=None, skip_first_ready=False):
        s = S()
        orient = "N" if part == "V" else "T"
        filler = list(filler) if filler else []
        state = {"gap": 0}
        def take(n):
            while filler and n > 0:
                if state["gap"] > 0: return
                op = filler[0]
                if op[0] == "gap":
                    state["gap"] = op[1]; filler.pop(0); return
                filler.pop(0)
                s.append(op)
                if op[0] == "i":
                    mn = op[1].split()[0]
                    if mn.startswith("v_mfma"): n -= 4
                    elif mn in ("v_exp_f32", "v_rcp_f32"): n -= 2
                    elif mn.endswith(":"): pass
                    else: n -= 1
                elif op[0] in ("lds", "vm"): n -= 1
        def ready(ks):
            if ks in waits:
                nxt = min([w for w in waits if w > ks] + [20])
                s.vmw(*[f"W{part}{b}" for b in range(ks // 2, nxt // 2)])
                s.bar()
        if not skip_first_ready: ready(0)
        for g in self.frag_reads(part, 0, 0, f"{part}f0"): s.extend(g)
        for g in self.frag_reads(part, 1, 1, f"{part}f1"): s.extend(g)
        if pre: s.extend(pre)
        for ks in range(20):
            self.tick(s, f"{part}{ks:02d}")
            nxt = []
            if ks + 2 < 20:
                ready(ks + 2)
                nxt = self.frag_reads(part, ks + 2, (ks + 2) % 4, f"{part}f{ks+2}")
            s.lgw(f"{part}f{ks}")
            m = self.mfmas(ks, ks % 4, ks == 0, orient)
            j = 0
            extra = list(plan.get(ks, []))
            for op in m:
                s.append(op)
                if j < len(nxt): s.extend(nxt[j])
                j += 1
                used = False
                if extra and j in (2, 4, 6):
                    s.extend(extra.pop(0)); used = True
                if state["gap"] > 0: state["gap"] -= 1
                elif not used: take(per_slot)
            for g in extra: s.extend(g)
        state["gap"] = 0
        while filler:
            op = filler.pop(0)
            if op[0] != "gap": s.append(op)
        return s

    def phaseV(self):
        s = S(); s.c("---- phase V ----")
        fill = getattr(self, "filler_V", None)
        if fill is not None:
            plan = {0: self.dma_w("V", 4), 2: self.dma_w("V", 5), 4: self.dma_w("V", 6), 6: self.dma_w("V", 7), 8: self.dma_w("V", 8), 10: self.dma_w("V", 9)}
            for i, ks in enumerate((12, 14, 16, 18)): plan[ks] = self.dma_w("Q", i)
            self.wq_next = 4
            f = S(); f.append(("gap", 2)); f.extend(fill)
            s.extend(self.gemm_resident("V", plan, waits=(0, 6, 10, 14, 18), filler=f, per_slot=self.opts.get("psV", 2)))
        else:
            plan = {0: self.dma_w("V", 6), 2: self.dma_w("V", 7), 5: self.dma_w("V", 8), 7: self.dma_w("V", 9)}
            for i, ks in enumerate((9, 12, 14, 17, 19)): plan[ks] = self.dma_w("Q", i)
            self.wq_next = 5
            s.extend(self.gemm_resident("V", plan))
        self.stamp(s, "Vgemm")
        if self.dump == "V":
            s.extend(self.dump_regs([f"v{self.vACC+i}" for i in range(24)], "accV"))
        return s

    def kv(self):
        s = S(); s.c("---- kv partial ----")
        B = self.vB1
        def A(tt, t, r): return self.vACC + (tt * 3 + t) * 4 + r
        KA = 168; BF = 216; D = self.vPP; R = 160
        s.i(f"v_mov_b32 v{self.vT}, 0x3f803f80")
        s.i(f"v_cmp_gt_u32 vcc, 210, v0")
        s.i(f"s_mov_b64 s[{sM2}:{sM2+1}], vcc")
        for t in (2, 0, 1):
            for tt in range(2):
                s.i(f"v_cvt_pk_bf16_f32 v{B+4*t+2*tt}, v{A(tt,t,0)}, v{A(tt,t,1)}")
                s.i(f"v_cvt_pk_bf16_f32 v{B+4*t+2*tt+1}, v{A(tt,t,2)}, v{A(tt,t,3)}")
            if t == 2:
                for i in range(4):
                    s.i(f"v_cndmask_b32 v{B+8+i}, v{B+8+i}, v{self.vT}, s[{sONE}:{sONE+1}]")
            s.lds(f"ds_write_b128 v{self.vBVW}, v[{B+4*t}:{B+4*t+3}] offset:{t*1024}", "bvw")
        weave_q = self.opts.get("weaveKVQ", 1) and self.stop >= 5 and not self.dump
        if weave_q:
            s.vmw("WQ0", "WQ1", "WQ2")
        s.lg0()
        self.tick(s, "kv_a")
        s.bar()
        self.tick(s, "kv_b")
        r_ = S()
        for v in range(4):
            r_.lds(f"ds_read_b128 v[{BF+4*v}:{BF+4*v+3}], v{self.vBVR} offset:{v*3072}", f"kvr{v}")
            for mt in range(3):
                r = KA + (v * 3 + mt) * 4
                off = v * 5120 + mt * 32
                r_.lds(f"ds_read_b64_tr_b16 v[{r}:{r+1}], v{self.vPKR} offset:{off}", f"kvr{v}")
                r_.lds(f"ds_read_b64_tr_b16 v[{r+2}:{r+3}], v{self.vPKR} offset:{off+2560}", f"kvr{v}")
        r_.append(("gap", 1))
        for v in range(4):
            r_.lgw(f"kvr{v}")
            for mt in range(3):
                r = KA + (v * 3 + mt) * 4
                c = "0" if v == 0 else f"v[{D+4*mt}:{D+4*mt+3}]"
                r_.i(f"v_mfma_f32_16x16x32_bf16 v[{D+4*mt}:{D+4*mt+3}], v[{r}:{r+3}], v[{BF+4*v}:{BF+4*v+3}], {c}")
        r_.append(("gap", 2))
        for mt in range(3):
            r_.i(f"v_cvt_pk_bf16_f32 v{B+2*mt}, v{D+4*mt}, v{D+4*mt+1}")
            r_.i(f"v_cvt_pk_bf16_f32 v{B+2*mt+1}, v{D+4*mt+2}, v{D+4*mt+3}")
            va = self.vSTW if mt < 2 else self.vSTW2
            r_.lds(f"ds_write_b64 v{va}, v[{B+2*mt}:{B+2*mt+1}] offset:{32*mt}", "stw")
        r_.append(("gap", 2))
        r_.lgw("stw")
        r_.bar()
        r_.lds(f"ds_read_b128 v[{R}:{R+3}], v{self.vSTR}", "str")
        r_.append(("gap", 3))
        r_.lgw("str")
        for i in range(4): r_.i(f"v_cndmask_b32 v{R+i}, 0, v{R+i}, s[{sM2}:{sM2+1}]")
        r_.vm(f"buffer_store_dwordx4 v[{R}:{R+3}], v{self.vPST}, {srd(S_WS)}, 0 offen sc1", "pst")
        self.tick(r_, "kv_pub")
        if weave_q:
            self.filler_Q = r_
        else:
            self.filler_Q = None
            s.extend([op for op in r_ if op[0] != "gap"])
            for lb in range(self.wq_next, 7):
                for x in self.dma_w("Q", lb): s.extend(x)
            self.wq_next = 7
        self.stamp(s, "kvpub")
        if self.dump == "KV": s.vm0()
        return s

    def hop1_load_groups(self, tag):
        H = self.aH
        gs = []
        first = True
        for j in range(4):
            opt = (j == 3)
            for pq in range(4):
                g = S()
                if first:
                    for q in range(1, 4): g.i(f"s_mov_b32 s{sT0+q}, {q*4*PS}")
                    first = False
                if opt:
                    lab = f"L_h1s_{tag}_{pq}"
                    g.i(f"s_cmp_ge_u32 s{sWAVE}, 2")
                    g.i(f"s_cbranch_scc1 {lab}")
                r = H + (j * 4 + pq) * 4
                so = "0" if pq == 0 else f"s{sT0+pq}"
                g.vm(f"buffer_load_dwordx4 a[{r}:{r+3}], v{self.vH1}, {srd(S_WS)}, {so} offen offset:{j*1024} sc1", tag, opt)
                if opt: g.i(f"{lab}:")
                gs.append(g)
        return gs

    def phaseQ(self):
        s = S(); s.c("---- phase Q ----")
        F = self.vFL
        fl = S().vm(f"buffer_load_dwordx4 v[{F}:{F+3}], v{self.vFLG}, {srd(S_WS)}, 0 offen sc1", "fl")
        fill = self.filler_Q
        plan = {}
        if fill is not None:
            plan = {0: self.dma_w("Q", 4) + self.dma_w("Q", 5), 2: self.dma_w("Q", 6), 4: self.dma_w("Q", 7), 6: [fl] + self.dma_w("Q", 8), 8: self.dma_w("Q", 9),
                    9: self.dma_wo(17, "woC")}
            self.bg_qe = [x for ks in (18, 19, 0, 1, 2, 3) for x in self.dma_wo(ks, "woA")]
            self.wo_h1 = (4, 5); self.wo_o = (6, 7, 8, 9); self.wo_late = (10, 11, 12, 13, 14, 15, 16)
            main = self.gemm_resident("Q", plan, filler=fill, per_slot=self.opts.get("psQ", 2), skip_first_ready=True)
        else:
            plan = {0: [fl] + self.dma_w("Q", 7), 2: self.dma_w("Q", 8), 5: self.dma_w("Q", 9), 7: self.dma_wo(17, "woC"), 8: self.dma_wo(18, "woC"), 9: self.dma_wo(19, "woC")}
            self.bg_qe = [x for ks in (0, 1, 2, 3, 4, 5) for x in self.dma_wo(ks, "woA")]
            self.wo_h1 = (6, 7); self.wo_o = (8, 9, 10, 11); self.wo_late = (12, 13, 14, 15, 16)
            main = self.gemm_resident("Q", plan)
        h1 = self.hop1_load_groups("h1") if self.stop >= 7 else []
        idx = [i for i, op in enumerate(main) if is_mfma(op) and self.is_gemm_mfma(op)]
        cut = idx[self.opts.get("h1at", 65)] + 1
        head, tail = S(main[:cut]), S(main[cut:])
        s.extend(head)
        if self.stop >= 7: self.flags_check(s)
        tail, left = weave(tail, h1, every=3, start=1)
        s.extend(tail)
        for g in left: s.extend(g)
        self.stamp(s, "Qgemm")
        if self.dump == "Q":
            s.extend(self.dump_regs([f"v{self.vACC+i}" for i in range(24)], "accQ"))
        return s
    def is_gemm_mfma(self, op):
        d = op[1].split()[1]
        lo = int(d[2:d.index(":")])
        return self.vACC <= lo < self.vACC + 24

    def hop1(self):
        s = S(); s.c("---- hop1: gather + reduce kv partials ----")
        H = self.aH
        D = self.vAF
        t = self.vT
        s.i(f"s_mov_b32 s{sCNT}, 0")
        self.tick(s, "h1_a")
        s.vmw("h1")
        self.tick(s, "h1_b")
        s.i("L_h1_check:")
        s.i(f"s_cmp_lt_u32 s{sWAVE}, 2")
        s.i("s_cbranch_scc1 L_h1_nozero")
        for i in range(16): s.i(f"v_accvgpr_write_b32 a{H+48+i}, 0")
        s.i("s_nop 1")
        s.i("L_h1_nozero:")
        for pq in range(4):
            for j in range(4):
                r = H + (j * 4 + pq) * 4
                c = "0" if pq == 0 else f"v[{D+4*j}:{D+4*j+3}]"
                s.i(f"v_mfma_f32_16x16x32_bf16 v[{D+4*j}:{D+4*j+3}], v[{self.vSEL}:{self.vSEL+3}], a[{r}:{r+3}], {c}")
        s.i("s_nop 7")
        s.i(f"v_pk_add_f32 v[{t}:{t+1}], v[{D}:{D+1}], v[{D+2}:{D+3}]")
        s.i(f"v_pk_add_f32 v[{t+2}:{t+3}], v[{D+4}:{D+5}], v[{D+6}:{D+7}]")
        for i in range(8, 16, 4):
            s.i(f"v_pk_add_f32 v[{t}:{t+1}], v[{t}:{t+1}], v[{D+i}:{D+i+1}]")
            s.i(f"v_pk_add_f32 v[{t+2}:{t+3}], v[{t+2}:{t+3}], v[{D+i+2}:{D+i+3}]")
        s.i(f"v_pk_add_f32 v[{t}:{t+1}], v[{t}:{t+1}], v[{t+2}:{t+3}]")
        s.i(f"v_cmp_u_f32 vcc, v{t}, v{t+1}")
        s.i("s_nop 1")
        s.i(f"s_or_b32 s{sM}, vcc_lo, vcc_hi")
        s.i(f"s_cmp_eq_u32 s{sM}, 0")
        s.i("s_cbranch_scc1 L_h1_ok")
        s.i("L_h1_poll:")
        s.i(f"s_add_u32 s{sCNT}, s{sCNT}, 1")
        s.i(f"s_cmp_gt_u32 s{sCNT}, {SPIN_MAX}")
        s.i("s_cbranch_scc1 L_h1_ok")
        s.i(f"buffer_load_dword v{self.vSM}, v{self.vS1}, {srd(S_WS)}, 0 offen sc1")
        s.i("s_waitcnt vmcnt(0)")
        s.i(f"v_cmp_eq_u32 vcc, -1, v{self.vSM}")
        s.i("s_nop 1")
        s.i(f"s_or_b32 s{sT0}, vcc_lo, vcc_hi")
        s.i(f"s_cmp_lg_u32 s{sT0}, 0")
        s.i("s_cbranch_scc1 L_h1_poll")
        for g in self.hop1_load_groups("h1r"): s.extend(g)
        s.i("s_waitcnt vmcnt(0)")
        s.i("s_branch L_h1_check")
        s.i("L_h1_ok:")
        self.tick(s, "h1_c")
        s.call(lambda: setattr(self.P, "vm", [x for x in self.P.vm if x[0] not in ("h1r",)]))
        bg = [x for ks in self.wo_h1 for x in self.dma_wo(ks, "woB")]
        w = S()
        for j in range(4):
            w.i(f"v_cvt_pk_bf16_f32 v{t+2*(j&1)}, v{D+4*j}, v{D+4*j+1}")
            w.i(f"v_cvt_pk_bf16_f32 v{t+2*(j&1)+1}, v{D+4*j+2}, v{D+4*j+3}")
            opt = (j == 3)
            if opt:
                w.i(f"s_cmp_ge_u32 s{sWAVE}, 2")
                w.i("s_cbranch_scc1 L_h1_skipw")
            w.i("s_mov_b64 exec, 0xffffffff")
            w.lds(f"ds_write_b64 v{self.vKVW}, v[{t+2*(j&1)}:{t+2*(j&1)+1}] offset:{j*1024}", "kvw")
            w.i("s_mov_b64 exec, -1")
            if opt: w.i("L_h1_skipw:")
        s.extend(w)
        for x in bg: s.extend(x)
        s.lg0()
        s.bar()
        self.bg_o = [x for ks in self.wo_o for x in self.dma_wo(ks, "woB")]
        self.bg_late = [x for ks in self.wo_late for x in self.dma_wo(ks, "woL")]
        self.stamp(s, "hop1")
        return s

    def ocomp(self):
        s = S(); s.c("---- o = phi_q kv / den ----")
        AO = 64
        def reads(i):
            out = []
            for t in range(6):
                r = AO + (t * 5 + i) * 4
                if t < 4: va, off = self.vOA, 320 * t + 16 * i
                elif t == 4: va, off = self.vOB, 16 * i
                else: va, off = self.vOC, 16 * i
                out.append(S().lds(f"ds_read_b128 a[{r}:{r+3}], v{va} offset:{off}", f"oa{i}"))
            return out
        D = self.vAF
        for g in reads(0) + reads(1): s.extend(g)
        bg = list(self.bg_o); self.bg_o = []
        for i in range(5):
            s.lgw(f"oa{i}")
            nxt = reads(i + 2) if i + 2 < 5 else []
            for t in (5, 0, 1, 2, 3, 4):
                r = AO + (t * 5 + i) * 4
                c = "0" if i == 0 else f"v[{D+4*t}:{D+4*t+3}]"
                s.i(f"v_mfma_f32_16x16x32_bf16 v[{D+4*t}:{D+4*t+3}], a[{r}:{r+3}], v[{self.vPHI+4*i}:{self.vPHI+4*i+3}], {c}")
                if nxt: s.extend(nxt.pop(0))
                elif bg and i < 3: s.extend(bg.pop(0))
            if bg and i < 3: s.extend(bg.pop(0));
            if bg and i < 3: s.extend(bg.pop(0))
        for g in bg: s.extend(g)
        self.tick(s, "o_m")
        t0 = self.vT
        s.i(f"v_add_f32 v{t0}, 0x358637bd, v{D+20}")
        s.i(f"v_rcp_f32 v{t0}, v{t0}")
        O = self.vO
        for i in range(0, 20, 2): s.i(f"v_pk_mul_f32 v[{D+i}:{D+i+1}], v[{D+i}:{D+i+1}], v[{t0}:{t0+1}] op_sel_hi:[1,0]")
        for i in (8, 9, 0, 1, 2, 3, 4, 5, 6, 7): s.i(f"v_cvt_pk_bf16_f32 v{O+i}, v{D+2*i}, v{D+2*i+1}")
        s.i(f"v_permlane32_swap_b32 v{O+8}, v{O+10}")
        s.i(f"v_permlane32_swap_b32 v{O+9}, v{O+11}")
        for mode in ((0, 1) if self.fast else (0,)):
            fl = "" if mode == 1 else " sc1"
            if self.fast:
                if mode == 0:
                    s.i(f"s_cmp_eq_u32 s{sFAST}, 1")
                    s.i("s_cbranch_scc1 L_ost_fast")
                else:
                    s.i("s_branch L_ost_done")
                    s.i("L_ost_fast:")
            opt = (mode == 1)
            s.vm(f"buffer_store_dwordx4 v[{O}:{O+3}], v{self.vOS1}, {srd(S_WS)}, 0 offen{fl}", "ost", opt)
            s.vm(f"buffer_store_dwordx4 v[{O+4}:{O+7}], v{self.vOS1}, {srd(S_WS)}, 0 offen offset:256{fl}", "ost", opt)
            s.vm(f"buffer_store_dwordx4 v[{O+8}:{O+11}], v{self.vOS2}, {srd(S_WS)}, 0 offen{fl}", "ost", opt)
            s.i("s_waitcnt vmcnt(0)")
            s.i("s_mov_b64 exec, 1")
            s.vm(f"buffer_store_dword v{self.vF2V}, v{self.vF2W}, {srd(S_WS)}, 0 offen{fl}", "of2", True)
            s.i("s_mov_b64 exec, -1")
        if self.fast: s.i("L_ost_done:")
        s.call(lambda: setattr(self.P, "vm", [x for x in self.P.vm if x[0] == "of2"]))
        self.stamp(s, "opub")
        for x in self.bg_late: s.extend(x)
        if self.dump == "O": s.vm0()
        return s

    def of_load_groups(self, tag):
        F = self.vF
        gs = []
        for k in range(10):
            for tl in range(2):
                g = S()
                if k == 0 and tl == 0:
                    g.i(f"s_movk_i32 s{sT1}, 4096")
                    g.i(f"s_movk_i32 s{sT2}, 8192")
                va = self.vOF if tl == 0 else self.vOF2
                r = F + (k * 2 + tl) * 4
                so = "0" if k < 4 else f"s{sT0 + k//4}"
                g.vm(f"buffer_load_dwordx4 v[{r}:{r+3}], v{va}, {srd(S_WS)}, {so} offen offset:{(k%4)*1024} sc1", f"{tag}{k}")
                gs.append(g)
        return gs

    def wo_reads(self, k):
        out = []
        for ct in range(5):
            r = (k * 5 + ct) * 4
            off = k * 5120 + 8 * ct
            out.append(S().lds(f"ds_read_b64_tr_b16 a[{r}:{r+1}], v{self.vWOA} offset:{off}", f"wof{k}"))
            out.append(S().lds(f"ds_read_b64_tr_b16 a[{r+2}:{r+3}], v{self.vWOA} offset:{off+2560}", f"wof{k}"))
        return out

    def p3(self):
        s = S(); s.c("---- P3: out = o @ wo ----")
        F = self.vF
        self.tick(s, "P3_a")
        s.vmw("woL")
        s.bar()
        self.tick(s, "P3_b")
        NPRE = self.opts.get("npre", 3)
        for k in range(NPRE):
            for g in self.wo_reads(k): s.extend(g)
        s.i(f"s_mov_b32 s{sCNT}, 0")
        s.i("L_h2_poll:")
        s.i(f"buffer_load_dword v{self.vSM}, v{self.vS2}, {srd(S_WS)}, 0 offen sc1")
        s.i(f"s_add_u32 s{sCNT}, s{sCNT}, 1")
        s.i(f"s_cmp_gt_u32 s{sCNT}, {SPIN_MAX}")
        s.i("s_cbranch_scc1 L_h2_go")
        s.i("s_waitcnt vmcnt(0)")
        s.i(f"v_cmp_ne_u32 vcc, s{sTAG}, v{self.vSM}")
        s.i("s_nop 1")
        s.i(f"s_and_b32 s{sT0}, vcc_lo, 0xffff")
        s.i("s_cbranch_scc1 L_h2_poll")
        s.i("L_h2_go:")
        s.call(lambda: setattr(self.P, "vm", []))
        self.tick(s, "P3_seen")
        lg = self.of_load_groups("of")
        npre = 8
        for g in lg[:npre]: s.extend(g)
        rest = lg[npre:]
        ACC = self.vACC
        for k in range(10):
            s.vmw(f"of{k}")
            s.lgw(f"wof{k}")
            nxt = self.wo_reads(k + NPRE) if k + NPRE < 10 else []
            order = [(tl, ct) for tl in (0, 1) for ct in range(5)] if k < 9 else [(tl, ct) for tl in (1, 0) for ct in range(5)]
            n = 0
            for (tl, ct) in order:
                r = (k * 5 + ct) * 4
                d = ACC + (tl * 5 + ct) * 4
                f = F + (k * 2 + tl) * 4
                c = "0" if k == 0 else f"v[{d}:{d+3}]"
                s.i(f"v_mfma_f32_16x16x32_bf16 v[{d}:{d+3}], a[{r}:{r+3}], v[{f}:{f+3}], {c}")
                n += 1
                if nxt: s.extend(nxt.pop(0))
                if n in (3, 7) and rest: s.extend(rest.pop(0))
                if k == 9 and n >= 8:
                    ct2 = n - 8
                    d2 = ACC + (5 + ct2) * 4
                    s.lds(f"ds_write_b128 v{self.vEXW}, v[{d2}:{d2+3}] offset:{R0 + ct2*1024}", "exw")
        self.stamp(s, "gemm3")
        for ct2 in (3, 4):
            d2 = ACC + (5 + ct2) * 4
            s.lds(f"ds_write_b128 v{self.vEXW}, v[{d2}:{d2+3}] offset:{R0 + ct2*1024}", "exw")
        s.lg0()
        s.bar()
        X = 104
        for ct in range(5):
            s.lds(f"ds_read_b128 v[{X+4*ct}:{X+4*ct+3}], v{self.vEXR} offset:{R0 + ct*1024}", f"exr{ct}")
        O = self.vO
        fl = self.opts.get("outfl", 0)
        fls = {0: "", 1: " sc1", 2: " nt", 3: " sc0 sc1"}[fl]
        for ct in range(5):
            s.lgw(f"exr{ct}")
            for i in (4*ct, 4*ct+2): s.i(f"v_pk_add_f32 v[{ACC+i}:{ACC+i+1}], v[{ACC+i}:{ACC+i+1}], v[{X+i}:{X+i+1}]")
            for i in (2*ct, 2*ct+1): s.i(f"v_cvt_pk_bf16_f32 v{O+i}, v{ACC+2*i}, v{ACC+2*i+1}")
            if ct == 1: s.vm(f"buffer_store_dwordx4 v[{O}:{O+3}], v{self.vOUT}, {srd(S_OUT)}, 0 offen{fls}", "out")
            if ct == 3: s.vm(f"buffer_store_dwordx4 v[{O+4}:{O+7}], v{self.vOUT}, {srd(S_OUT)}, 0 offen offset:16{fls}", "out")
        s.vm(f"buffer_store_dwordx2 v[{O+8}:{O+9}], v{self.vOUT}, {srd(S_OUT)}, 0 offen offset:32{fls}", "out")
        s.i(f"s_or_b32 s{sT0}, s2, s{sWAVE}")
        s.i(f"s_cmp_lg_u32 s{sT0}, 0")
        s.i("s_cbranch_scc1 L_noep")
        s.i(f"v_mov_b32 v{self.vT}, {EPOCH}")
        s.i(f"v_mov_b32 v{self.vT+1}, s{sEPN}")
        s.i("s_mov_b64 exec, 1")
        s.vm(f"buffer_store_dword v{self.vT+1}, v{self.vT}, {srd(S_WS)}, 0 offen sc1", "ep", True)
        s.i("s_mov_b64 exec, -1")
        s.i("L_noep:")
        self.stamp(s, "out")
        return s

    def finish(self):
        P = self.P
        if self.profile:
            P.vm_drain()
            ins = "s_memtime" if self.ticks is not None else "s_memrealtime"
            P(f"{ins} s[100:101]"); self.stampnames.append("end"); nlast = self.nstamp; self.nstamp += 1
            P("s_waitcnt lgkmcnt(0)")
            P(f"s_lshl_b32 s{sT0}, s2, 2")
            P(f"s_add_u32 s{sT0}, s{sT0}, s{sWAVE}")
            P(f"s_lshl_b32 s{sT0}, s{sT0}, 7")
            P(f"s_add_u32 s{sT0}, s{sT0}, {STAMPS}")
            P("v_mov_b32 v2, 0")
            P("s_mov_b64 exec, 1")
            for i in range(16):
                if i < self.nstamp:
                    r = 100 if i == nlast else stamp_reg(i)
                    P(f"v_mov_b32 v4, s{r}")
                    P(f"v_mov_b32 v5, s{r+1}")
                else:
                    P("v_mov_b32 v4, 0"); P("v_mov_b32 v5, 0")
                P(f"buffer_store_dwordx2 v[4:5], v2, {srd(S_WS)}, s{sT0} offen offset:{8*i}")
                P("s_nop 1")
            P("s_waitcnt vmcnt(0)")
        P("L_end:")
        P("s_endpgm")

HEADER = f"""; hedgehog linear attention: fused persistent kernel (K/V/Q projections, feature maps, kv reduction, output projection)
; @launch grid=(256,1,1) block=(256,1,1) lds={LDS_SIZE}
.amdgcn_target "amdgcn-amd-amdhsa--gfx950"
.text
.globl {NAME}_kernel
.p2align 8
.type {NAME}_kernel,@function
{NAME}_kernel:
"""
FOOTER = f"""
.section .rodata,"a"
.p2align 6
.amdhsa_kernel {NAME}_kernel
  .amdhsa_next_free_vgpr 512
  .amdhsa_next_free_sgpr 102
  .amdhsa_accum_offset 256
  .amdhsa_group_segment_fixed_size 0
  .amdhsa_kernarg_size 56
  .amdhsa_user_sgpr_count 2
  .amdhsa_user_sgpr_kernarg_segment_ptr 1
  .amdhsa_system_sgpr_workgroup_id_x 1
  .amdhsa_float_denorm_mode_32 3
  .amdhsa_float_denorm_mode_16_64 3
.end_amdhsa_kernel
"""

if __name__ == "__main__":
    ap = argparse.ArgumentParser()
    ap.add_argument("-o", default="k.s")
    ap.add_argument("--stop", type=int, default=99)
    ap.add_argument("--profile", action="store_true")
    ap.add_argument("--dump", default=None)
    ap.add_argument("--norot", action="store_true")
    ap.add_argument("--nofast", action="store_true")
    ap.add_argument("--ticks", default=None)
    ap.add_argument("--opt", action="append", default=[])
    a = ap.parse_args()
    opts = {}
    for o in a.opt:
        k, v = o.split("="); opts[k] = int(v)
    dbg = a.profile or a.dump
    g = Gen(stop=a.stop, profile=a.profile, dump=a.dump, norot=a.norot, ticks=a.ticks.split(',') if a.ticks else None,
            ws_size=0x4000000 if dbg else 0x400000, fast=not a.nofast, opts=opts)
    P = g.build()
    body, nn = P.render()
    open(a.o, "w").write(HEADER + body + FOOTER)
    print("nops inserted:", nn, "dump info:", g.dumpinfo, "stamps:", ",".join(g.stampnames))
```

```python
import sys, argparse
from asmlib import Prog
from asmlib2 import S, emit, weave, weave_frac, is_mfma

NAME = "standalone__linear_kernel_hedgehog__prompt"

R0 = 0
R1 = 51200
XR = 102400
PHI = 102400
WO = 51200
WP = 153600
ZR = WP + 2048
KVT = 157696
BV = 122880
DUM = 161792
LDS_SIZE = 163840

PART = 0
PS = 3584
OBUF = 0x100000
DBG0 = 0x400000
STAMPS = 0x3E00000
OOB = 0x7f000000
FLAG = 0xF0000
EPOCH = 0xF8000
FLAG2 = 0xF1000

S_X, S_WK, S_WV, S_WQ, S_PHI, S_WO, S_OUT, S_DBG, S_WS = 4, 8, 12, 16, 20, 24, 28, 32, 36
sWAVE, sTB, sPJ, sROT, sTB3, sCB, sGRP = 40, 41, 42, 43, 44, 45, 46
sFAST = 3
sT0, sT1, sT2, sT3, sT4, sT5 = 48, 49, 50, 51, 52, 53
sXW = 54; sL2E = 55; sCNT = 56; sFLAGV = 57; sTAG = 62; sEPN = 61
sM = 58; sM2 = 96; sONE = 0
sKA = 84
sXO = 64
sWOFS = 74
sW1280 = 47
sSO = 63
NSTAMP = 8
def stamp_reg(i): return 98 if i == 0 else 84 + 2 * (i - 1)
SPIN_MAX = 20000

def srd(s): return f"s[{s}:{s+3}]"

class Gen:
    vLANE = 1
    vXD = 2
    vWD = 6
    vWOD = 8
    vBVW, vBVR, vSTW, vSTW2, vSTR = 10, 11, 12, 13, 14
    vXA0, vXA1 = 16, 17
    vP0, vP2, vPV, vP2V = 18, 19, 20, 21
    vG, vN = 22, 23
    vPKW, vPKR, vDW, vRED, vPST, vH1, vFLG, vKVW = 24, 25, 26, 27, 28, 29, 30, 31
    vSEL = 32
    vOA, vOB, vOC, vOS1, vOS2, vWOA, vOF, vOF2, vEXW, vEXR, vOUT, vS1, vS2 = 36, 37, 38, 39, 40, 41, 42, 43, 44, 45, 46, 47, 48
    vFL = 52
    vSM = 50
    vBAD = 51
    vT = 56
    vF2W, vF2V = 240, 241
    vTCH, vTCD = 242, 243
    vSENT = 244
    vACC = 64
    vAF = 88
    vB1 = 136
    vPP = 148
    vE = 168
    vPHI = 208
    vF = 136
    vO = 228
    aX = 0
    aF = 160
    aH = 0

    def __init__(self, stop=99, profile=False, dump=None, norot=False, ticks=None, ws_size=0x400000, fast=True, opts=None):
        self.P = Prog()
        self.stop = stop; self.profile = profile; self.dump = dump; self.norot = norot; self.ticks = ticks
        self.nstamp = 0; self.dumpinfo = []; self.dump_base = DBG0; self.stampnames = []
        self.ws_size = ws_size; self.fast = fast
        self.opts = opts or {}

    def tick_op(self, name):
        if not self.profile: return []
        if self.ticks is None:
            if not (name.startswith("S_") or name == "start"): return []
        elif not any(name.startswith(t) for t in self.ticks): return []
        if self.nstamp >= NSTAMP - 1: return []
        ins = "s_memtime" if self.ticks is not None else "s_memrealtime"
        r = stamp_reg(self.nstamp)
        ops = [("i", f"{ins} s[{r}:{r+1}]")]
        self.stampnames.append(name); self.nstamp += 1
        return ops
    def tick(self, s, name):
        s.append(("call", lambda n=name: emit(self.P, self.tick_op(n))))
    def stamp(self, s, name):
        self.tick(s, "S_" + name)

    def dump_regs(self, regs, name):
        s = S()
        n = len(regs); stride = n * 256
        base = self.dump_base
        self.dumpinfo.append((name, base, n))
        self.dump_base += 1024 * stride
        assert self.dump_base <= STAMPS, "dump overflow"
        s.lg0()
        s.i("s_nop 7\ns_nop 7")
        s.i(f"s_lshl_b32 s{sT0}, s2, 2")
        s.i(f"s_add_u32 s{sT0}, s{sT0}, s{sWAVE}")
        s.i(f"s_mul_i32 s{sT0}, s{sT0}, {stride}")
        s.i(f"s_add_u32 s{sT0}, s{sT0}, {base}")
        s.i(f"v_lshlrev_b32 v255, 2, v{self.vLANE}")
        for i, r in enumerate(regs):
            if r.startswith("a"):
                s.i(f"v_accvgpr_read_b32 v254, {r}"); src = "v254"
            else: src = r
            s.i(f"s_add_u32 s{sT1}, s{sT0}, {i*256}")
            s.vm(f"buffer_store_dword {src}, v255, {srd(S_WS)}, s{sT1} offen", "dump")
            s.i("s_nop 1")
        s.vm0()
        return s

    def build(self):
        steps = [self.prologue, self.phaseK, lambda: self.epiFeat("K"), self.phaseV, self.kv, self.phaseQ,
                 lambda: self.epiFeat("Q"), self.hop1, self.ocomp, self.p3]
        for i, st in enumerate(steps):
            if self.stop >= i: emit(self.P, st())
        self.finish()
        return self.P

    def xfrag(self, tt, ks):
        b = self.aX + (ks * 2 + tt) * 4
        return f"a[{b}:{b+3}]"

    def dma_x(self, lb):
        gs = []
        slot = (lb % 3) * 4096
        for tt in range(2):
            for q in range(2):
                g = S()
                g.i(f"s_add_u32 m0, s{sXW}, {slot + tt*2048 + q*1024}")
                g.vm(f"buffer_load_dwordx4 v{self.vXD+tt*2+q}, {srd(S_X)}, s{sXO+lb} offen lds", f"x{lb}")
                gs.append(g)
        return gs
    def dma_w(self, part, lb):
        base = {"K": R0, "V": R1, "Q": R0}[part]
        sr = {"K": S_WK, "V": S_WV, "Q": S_WQ}[part]
        if self.opts.get("nodma") and part != "K": return []
        A = S(); B = S()
        A.i(f"s_add_u32 m0, s{sW1280}, {base + lb*5120}")
        A.vm(f"buffer_load_dwordx4 v{self.vWD}, {srd(sr)}, s{sWOFS+lb} offen lds", f"W{part}{lb}")
        B.i(f"s_add_u32 m0, s{sW1280}, {base + lb*5120 + 1024}")
        B.i("s_mov_b64 exec, 0xffff")
        B.vm(f"buffer_load_dwordx4 v{self.vWD+1}, {srd(sr)}, s{sWOFS+lb} offen lds", f"W{part}{lb}")
        B.i("s_mov_b64 exec, -1")
        return [A, B]
    def dma_wo(self, ks, tag):
        if self.opts.get("nodma"): return []
        A = S(); B = S()
        A.i(f"s_mov_b32 s{sSO}, {ks*40960}")
        A.i(f"s_add_u32 m0, s{sW1280}, {WO + ks*5120}")
        A.vm(f"buffer_load_dwordx4 v{self.vWOD}, {srd(S_WO)}, s{sSO} offen lds", tag)
        B.i(f"s_add_u32 m0, s{sW1280}, {WO + ks*5120 + 1024}")
        B.i("s_mov_b64 exec, 0xffff")
        B.vm(f"buffer_load_dwordx4 v{self.vWOD+1}, {srd(S_WO)}, s{sSO} offen lds", tag)
        B.i("s_mov_b64 exec, -1")
        return [A, B]

    def prologue(self):
        s = S()
        s.i("s_cmp_ge_u32 s2, 256")
        s.i("s_cbranch_scc1 L_end")
        if self.profile:
            ins = "s_memtime" if self.ticks is not None else "s_memrealtime"
            s.i(f"{ins} s[98:99]"); self.stampnames.append("start"); self.nstamp = 1
        s.i(f"s_load_dwordx8 s[{sKA}:{sKA+7}], s[0:1], 0")
        s.i(f"s_load_dwordx4 s[{sKA+8}:{sKA+11}], s[0:1], 32")
        s.i(f"s_load_dwordx2 s[{sKA+12}:{sKA+13}], s[0:1], 48")
        L = self.vLANE
        s.i(f"v_and_b32 v{L}, 63, v0")
        s.i(f"v_lshrrev_b32 v{self.vT}, 6, v0")
        s.i(f"v_readfirstlane_b32 s{sWAVE}, v{self.vT}")
        s.i(f"s_and_b32 s{sGRP}, s2, 7")
        s.i(f"s_lshr_b32 s{sT1}, s2, 3")
        if self.opts.get("map", 0) == 0:
            s.i(f"s_lshr_b32 s{sT2}, s{sT1}, 4")
            s.i(f"s_lshl_b32 s{sTB}, s{sGRP}, 1")
            s.i(f"s_add_u32 s{sTB}, s{sTB}, s{sT2}")
            s.i(f"s_and_b32 s{sPJ}, s{sT1}, 15")
        else:
            s.i(f"s_lshr_b32 s{sT2}, s{sT1}, 3")
            s.i(f"s_lshr_b32 s{sTB}, s{sGRP}, 1")
            s.i(f"s_lshl_b32 s{sTB}, s{sTB}, 2")
            s.i(f"s_add_u32 s{sTB}, s{sTB}, s{sT2}")
            s.i(f"s_and_b32 s{sPJ}, s{sGRP}, 1")
            s.i(f"s_lshl_b32 s{sPJ}, s{sPJ}, 3")
            s.i(f"s_and_b32 s{sT3}, s{sT1}, 7")
            s.i(f"s_add_u32 s{sPJ}, s{sPJ}, s{sT3}")
        s.i(f"s_and_b32 s{sCB}, s{sT1}, 7")
        s.i(f"s_lshr_b32 s{sT3}, s{sT1}, 3")
        s.i(f"s_lshl_b32 s{sTB3}, s{sGRP}, 2")
        s.i(f"s_add_u32 s{sTB3}, s{sTB3}, s{sT3}")
        if self.opts.get("map", 0) == 0:
            m = self.opts.get("rotm", 3)
            s.i(f"s_mul_i32 s{sROT}, s{sPJ}, {m}")
            s.i(f"s_mul_i32 s{sT2}, s{sT2}, 5")
            s.i(f"s_add_u32 s{sROT}, s{sROT}, s{sT2}")
            xm = self.opts.get("xrot", 3)
            if xm:
                s.i(f"s_mul_i32 s{sT2}, s{sGRP}, {xm}")
                s.i(f"s_add_u32 s{sROT}, s{sROT}, s{sT2}")
            s.i(f"s_mul_i32 s{sT1}, s{sROT}, 52429")
            s.i(f"s_lshr_b32 s{sT1}, s{sT1}, 19")
            s.i(f"s_mul_i32 s{sT1}, s{sT1}, 10")
            s.i(f"s_sub_u32 s{sROT}, s{sROT}, s{sT1}")
        else:
            s.i(f"s_mul_i32 s{sROT}, s{sCB}, 3")
            s.i(f"s_mul_i32 s{sT2}, s{sT2}, 5")
            s.i(f"s_lshr_b32 s{sT2}, s{sT2}, 1")
            s.i(f"s_add_u32 s{sROT}, s{sROT}, s{sT2}")
            s.i(f"s_lshr_b32 s{sT2}, s{sGRP}, 1")
            s.i(f"s_mul_i32 s{sT2}, s{sT2}, 3")
            s.i(f"s_add_u32 s{sROT}, s{sROT}, s{sT2}")
            s.i(f"s_mul_i32 s{sT1}, s{sROT}, 52429")
            s.i(f"s_lshr_b32 s{sT1}, s{sT1}, 19")
            s.i(f"s_mul_i32 s{sT1}, s{sT1}, 10")
            s.i(f"s_sub_u32 s{sROT}, s{sROT}, s{sT1}")
        s.i(f"s_cmp_ge_u32 s{sROT}, 10")
        s.i(f"s_cselect_b32 s{sT1}, 10, 0")
        s.i(f"s_sub_u32 s{sROT}, s{sROT}, s{sT1}")
        if self.norot: s.i(f"s_mov_b32 s{sROT}, 0")
        t0, t1, t2, t3 = self.vT, self.vT + 1, self.vT + 2, self.vT + 3
        XD = self.vXD
        s.i(f"v_lshrrev_b32 v{t0}, 3, v{L}")
        s.i(f"v_and_b32 v{t1}, 7, v{L}")
        s.i(f"v_lshrrev_b32 v{t2}, 1, v{t0}")
        s.i(f"v_xor_b32 v{XD}, v{t1}, v{t2}")
        s.i(f"v_xor_b32 v{XD+1}, 4, v{XD}")
        s.i(f"v_lshlrev_b32 v{XD}, 4, v{XD}")
        s.i(f"v_lshlrev_b32 v{XD+1}, 4, v{XD+1}")
        s.i(f"s_movk_i32 s{sT2}, 1280")
        s.i(f"v_mad_u32_u24 v{XD}, v{t0}, s{sT2}, v{XD}")
        s.i(f"v_add_u32 v{t0}, 8, v{t0}")
        s.i(f"v_mad_u32_u24 v{XD+1}, v{t0}, s{sT2}, v{XD+1}")
        s.i(f"v_add_u32 v{XD+2}, 20480, v{XD}")
        s.i(f"v_add_u32 v{XD+3}, 20480, v{XD+1}")
        s.i(f"s_lshl_b32 s{sT0}, s{sTB}, 2")
        s.i(f"s_add_u32 s{sT0}, s{sT0}, s{sWAVE}")
        s.i(f"s_mul_i32 s{sT4}, s{sT0}, {32*1280}")
        s.i(f"s_mul_i32 s{sXW}, s{sWAVE}, 12288")
        s.i(f"s_add_u32 s{sXW}, s{sXW}, {XR}")
        s.i(f"s_mul_i32 s{sW1280}, s{sWAVE}, 1280")
        s.i(f"s_mul_i32 s{sT5}, s{sPJ}, 80")
        s.i(f"s_lshl_b32 s{sXO}, s{sROT}, 7")
        s.i(f"s_mul_i32 s{sWOFS}, s{sROT}, {64*3840}")
        s.i(f"s_mul_i32 s{sT0}, s{sWAVE}, 80")
        s.i(f"s_movk_i32 s{sT2}, 3840")
        s.i(f"s_mov_b32 s{sT3}, 52429")
        for e in range(2):
            s.i(f"v_add_u32 v{t0}, s{sT0}, v{L}")
            if e: s.i(f"v_add_u32 v{t0}, 64, v{t0}")
            s.i(f"v_mul_u32_u24 v{t1}, s{sT3}, v{t0}")
            s.i(f"v_lshrrev_b32 v{t1}, 18, v{t1}")
            s.i(f"v_mul_u32_u24 v{t2}, 5, v{t1}")
            s.i(f"v_sub_u32 v{t0}, v{t0}, v{t2}")
            s.i(f"v_and_b32 v{t2}, 0x28, v{t1}")
            s.i(f"v_and_b32 v{t3}, 1, v{t1}")
            s.i(f"v_lshl_or_b32 v{t2}, v{t3}, 4, v{t2}")
            s.i(f"v_bfe_u32 v{t3}, v{t1}, 4, 1")
            s.i(f"v_lshl_or_b32 v{t2}, v{t3}, 2, v{t2}")
            s.i(f"v_bfe_u32 v{t3}, v{t1}, 1, 2")
            s.i(f"v_or_b32 v{t2}, v{t2}, v{t3}")
            s.i(f"v_lshlrev_b32 v{t0}, 4, v{t0}")
            s.i(f"v_mad_u32_u24 v{self.vWD+e}, v{t2}, s{sT2}, v{t0}")
        s.i("s_waitcnt lgkmcnt(0)")
        def mk(sd, p, size, off=None):
            if off is None:
                s.i(f"s_mov_b32 s{sd}, s{p}")
                s.i(f"s_and_b32 s{sd+1}, s{p+1}, 0xffff")
                s.i(f"s_mov_b32 s{sd+2}, {size}")
            else:
                reg, const = off
                if const: s.i(f"s_add_u32 s{sT0}, s{reg}, {const}"); r = sT0
                else: r = reg
                s.i(f"s_add_u32 s{sd}, s{p}, s{r}")
                s.i(f"s_addc_u32 s{sd+1}, s{p+1}, 0")
                s.i(f"s_and_b32 s{sd+1}, s{sd+1}, 0xffff")
                s.i(f"s_sub_u32 s{sd+2}, {size}, s{r}")
            s.i(f"s_mov_b32 s{sd+3}, 0x20000")
        s.i(f"s_load_dword s{sEPN}, s[{sKA+12}:{sKA+13}], {EPOCH}")
        mk(S_X, sKA + 0, 2048 * 1280, (sT4, 0))
        for g in self.dma_x(0): s.extend(g)
        mk(S_WK, sKA + 2, 640 * 3840, (sT5, 1280))
        for g in self.dma_w("K", 0): s.extend(g)
        self.tick(s, "P_a")
        for lb in range(1, 10):
            s.i(f"s_add_u32 s{sXO+lb}, s{sXO+lb-1}, 128")
            s.i(f"s_add_u32 s{sWOFS+lb}, s{sWOFS+lb-1}, {64*3840}")
            s.i(f"s_cmp_eq_u32 s{sROT}, {10-lb}")
            s.i(f"s_cselect_b32 s{sXO+lb}, 0, s{sXO+lb}")
            s.i(f"s_cselect_b32 s{sWOFS+lb}, 0, s{sWOFS+lb}")
            if lb == 1:
                for g in self.dma_x(1)[:2]: s.extend(g)
        mk(S_WV, sKA + 2, 640 * 3840, (sT5, 2560))
        mk(S_WQ, sKA + 2, 640 * 3840, (sT5, 0))
        mk(S_PHI, sKA + 4, 25600)
        s.i(f"s_mul_i32 s{sT3}, s{sCB}, 160")
        mk(S_WO, sKA + 6, 640 * 1280, (sT3, 0))
        mk(S_OUT, sKA + 8, 2048 * 1280)
        mk(S_DBG, sKA + 10, 256)
        mk(S_WS, sKA + 12, self.ws_size)
        su = S()
        self.setup_basic(su)
        self.setup2(su)
        self.setup3(su)
        self.wo_offsets(su)
        self.prefill_addr(su)
        if self.opts.get("touch", 1): self.touch_addr(su)
        pf = S()
        self.phi_stage(pf)
        self.prefill(pf)
        dm = self.dma_x(1)[2:] + self.dma_w("K", 1) + self.dma_x(2) + self.dma_w("K", 2)
        su = weave_frac(su, dm, lo=0.15, hi=1.0)
        s.extend(su)
        self.tick(s, "P_b")
        s.extend(pf)
        self.stamp(s, "prologue")
        return s

    def setup_basic(self, s):
        L = self.vLANE
        a, b_, c_, d_ = self.vT, self.vT + 1, self.vT + 2, self.vT + 3
        s.i(f"v_lshrrev_b32 v{self.vG}, 4, v{L}")
        s.i(f"v_and_b32 v{self.vN}, 15, v{L}")
        s.i(f"v_lshrrev_b32 v{a}, 1, v{self.vN}")
        s.i(f"v_xor_b32 v{a}, v{a}, v{self.vG}")
        s.i(f"v_lshlrev_b32 v{a}, 4, v{a}")
        s.i(f"v_lshl_add_u32 v{a}, v{self.vN}, 7, v{a}")
        s.i(f"v_add_u32 v{self.vXA0}, s{sXW}, v{a}")
        s.i(f"v_xor_b32 v{a}, 64, v{a}")
        s.i(f"v_add_u32 v{self.vXA1}, s{sXW}, v{a}")
        s.i(f"v_bfe_u32 v{a}, v{L}, 2, 2")
        s.i(f"v_and_b32 v{b_}, 1, v{self.vG}")
        s.i(f"v_lshl_add_u32 v{a}, v{b_}, 2, v{a}")
        s.i(f"v_lshrrev_b32 v{b_}, 1, v{self.vG}")
        s.i(f"v_lshl_add_u32 v{a}, v{a}, 1, v{b_}")
        s.i(f"v_mul_u32_u24 v{a}, 80, v{a}")
        s.i(f"v_and_b32 v{b_}, 3, v{L}")
        s.i(f"v_and_b32 v{c_}, 1, v{b_}")
        s.i(f"v_lshrrev_b32 v{d_}, 1, v{b_}")
        s.i(f"v_mul_u32_u24 v{d_}, 5, v{d_}")
        s.i(f"v_lshl_add_u32 v{d_}, v{c_}, 1, v{d_}")
        s.i(f"v_lshl_add_u32 v{self.vP0}, v{d_}, 3, v{a}")
        s.i(f"v_xor_b32 v{c_}, 1, v{c_}")
        s.i(f"v_lshl_add_u32 v{self.vP2}, v{c_}, 5, v{self.vP0}")
        s.i(f"v_lshl_add_u32 v{self.vPV}, v{b_}, 3, v{a}")
        s.i(f"v_add_u32 v{self.vPV}, {R1}, v{self.vPV}")
        s.i(f"v_add_u32 v{self.vP2V}, {R1}, v{self.vP2}")
        s.i(f"s_mov_b32 s{sL2E}, 0x3fb8aa3b")
        s.i(f"s_getreg_b32 s{sFLAGV}, hwreg(HW_REG_XCC_ID, 0, 4)")
        s.i("s_waitcnt lgkmcnt(0)")
        s.i(f"s_mul_i32 s{sEPN}, s{sEPN}, 0x9e3779b1")
        s.i(f"s_add_u32 s{sEPN}, s{sEPN}, 0x7f4a7c15")
        s.i(f"s_and_b32 s{sTAG}, s{sEPN}, 0xfffffff0")
        s.i(f"s_or_b32 s{sFLAGV}, s{sFLAGV}, s{sTAG}")

    def phi_stage(self, s):
        a = self.vT
        s.i(f"v_lshlrev_b32 v{a}, 4, v{self.vLANE}")
        s.i(f"s_mul_i32 s{sT0}, s{sPJ}, 1600")
        s.i(f"s_lshl_b32 s{sT1}, s{sWAVE}, 10")
        s.i(f"s_add_u32 s{sT0}, s{sT0}, s{sT1}")
        s.i(f"s_cmp_ge_u32 s{sWAVE}, 2")
        s.i(f"s_cselect_b32 s{sT0}, 0x100000, s{sT0}")
        s.i(f"s_add_u32 m0, s{sT1}, {WP}")
        s.i(f"v_add_u32 v{a}, s{sT0}, v{a}")
        s.vm(f"buffer_load_dwordx4 v{a}, {srd(S_PHI)}, 0 offen lds", "phi")

    def prefill_addr(self, s):
        a, b_, c_ = self.vT, self.vT + 1, self.vT + 2
        s.i(f"s_lshl_b32 s{sT0}, s{sPJ}, 4")
        s.i(f"s_add_u32 s{sT0}, s{sT0}, s{sTB}")
        s.i(f"s_mul_i32 s{sT0}, s{sT0}, {PS}")
        s.i(f"v_lshlrev_b32 v{a}, 4, v0")
        s.i(f"v_add_u32 v{self.vPST}, s{sT0}, v{a}")
        s.i(f"v_mov_b32 v{b_}, {OOB}")
        s.i(f"v_cmp_gt_u32 vcc, 224, v0")
        s.i(f"v_cndmask_b32 v{self.vPST}, v{b_}, v{self.vPST}, vcc")
        for i in range(4): s.i(f"v_mov_b32 v{self.vSENT+i}, -1")
    def touch_addr(self, s):
        a, b_, c_ = self.vT, self.vT + 1, self.vT + 2
        s.i(f"s_mul_i32 s{sT0}, s{sWAVE}, 20")
        s.i(f"v_add_u32 v{a}, s{sT0}, v{self.vLANE}")
        s.i(f"s_movk_i32 s{sT1}, 6554")
        s.i(f"v_mul_u32_u24 v{b_}, s{sT1}, v{a}")
        s.i(f"v_lshrrev_b32 v{b_}, 16, v{b_}")
        s.i(f"v_mul_u32_u24 v{c_}, 10, v{b_}")
        s.i(f"v_sub_u32 v{c_}, v{a}, v{c_}")
        s.i(f"v_lshlrev_b32 v{c_}, 7, v{c_}")
        s.i(f"s_movk_i32 s{sT2}, 0x5000")
        s.i(f"v_mad_u32_u24 v{b_}, v{b_}, s{sT2}, v{c_}")
        s.i(f"s_lshl_b32 s{sT0}, s{sTB}, 3")
        s.i(f"s_mul_i32 s{sT0}, s{sT0}, 20480")
        s.i(f"s_mul_i32 s{sT1}, s{sPJ}, 1280")
        s.i(f"s_add_u32 s{sT0}, s{sT0}, s{sT1}")
        s.i(f"s_add_u32 s{sT0}, s{sT0}, {OBUF}")
        s.i(f"v_add_u32 v{b_}, s{sT0}, v{b_}")
        s.i(f"v_mov_b32 v{c_}, {OOB}")
        s.i(f"v_cmp_gt_u32 vcc, 20, v{self.vLANE}")
        s.i(f"v_cndmask_b32 v{self.vTCH}, v{c_}, v{b_}, vcc")
    def prefill_groups(self):
        s0 = self.vSENT
        gs = [S().vm(f"buffer_store_dwordx4 v[{s0}:{s0+3}], v{self.vPST}, {srd(S_WS)}, 0 offen sc1", "pf")]
        return gs
    def prefill(self, s):
        for g in self.prefill_groups(): s.extend(g)

    def setup2(self, s):
        L = self.vLANE
        a, b_, c_, d_, e_, f_ = [self.vT + i for i in range(6)]
        s.i(f"s_mul_i32 s{sT3}, s{sWAVE}, 5120")
        s.i(f"s_add_u32 s{sT3}, s{sT3}, {PHI}")
        s.i(f"v_and_b32 v{a}, 1, v{self.vG}")
        s.i(f"v_lshl_add_u32 v{a}, v{a}, 4, v{self.vN}")
        s.i(f"v_mul_u32_u24 v{a}, 160, v{a}")
        s.i(f"v_lshrrev_b32 v{b_}, 1, v{self.vG}")
        s.i(f"v_mul_u32_u24 v{b_}, 80, v{b_}")
        s.i(f"v_add3_u32 v{self.vPKW}, v{a}, v{b_}, s{sT3}")
        s.i(f"s_lshr_b32 s{sT2}, s{sWAVE}, 1")
        s.i(f"s_mul_i32 s{sT3}, s{sT2}, 80")
        s.i(f"s_add_u32 s{sT3}, s{sT3}, {PHI}")
        s.i(f"v_bfe_u32 v{a}, v{L}, 2, 2")
        s.i(f"v_lshl_add_u32 v{a}, v{self.vG}, 2, v{a}")
        s.i(f"v_mul_u32_u24 v{a}, 160, v{a}")
        s.i(f"v_and_b32 v{b_}, 3, v{L}")
        s.i(f"v_lshl_add_u32 v{a}, v{b_}, 3, v{a}")
        s.i(f"v_add_u32 v{self.vPKR}, s{sT3}, v{a}")
        s.i(f"v_lshlrev_b32 v{a}, 4, v{L}")
        s.i(f"s_mul_i32 s{sT3}, s{sWAVE}, 3072")
        s.i(f"s_add_u32 s{sT3}, s{sT3}, {BV}")
        s.i(f"v_add_u32 v{self.vBVW}, s{sT3}, v{a}")
        s.i(f"s_and_b32 s{sT1}, s{sWAVE}, 1")
        s.i(f"s_cmp_eq_u32 s{sT1}, 1")
        s.i(f"s_cselect_b32 s{sT3}, 2, s{sT2}")
        s.i(f"s_lshl_b32 s{sT3}, s{sT3}, 10")
        s.i(f"s_add_u32 s{sT3}, s{sT3}, {BV}")
        s.i(f"v_add_u32 v{self.vBVR}, s{sT3}, v{a}")
        s.i(f"v_and_b32 v{b_}, 3, v{self.vN}")
        s.i(f"v_add_u32 v{b_}, 16, v{b_}")
        s.i(f"v_cmp_eq_u32 vcc, 4, v{self.vN}")
        s.i(f"v_cndmask_b32 v{b_}, v{b_}, 20, vcc")
        s.i(f"s_mov_b64 s[{sM}:{sM+1}], vcc")
        s.i(f"v_lshrrev_b32 v{c_}, 2, v{self.vN}")
        s.i(f"s_lshl_b32 s{sT3}, s{sT2}, 1")
        s.i(f"v_cmp_eq_u32 vcc, s{sT3}, v{c_}")
        s.i(f"s_or_b64 s[{sM}:{sM+1}], s[{sM}:{sM+1}], vcc")
        s.i(f"s_cmp_eq_u32 s{sT1}, 1")
        s.i(f"s_cselect_b64 s[{sM}:{sM+1}], s[{sM}:{sM+1}], -1")
        s.i(f"s_cselect_b32 s{sT4}, 1, 0")
        s.i(f"v_cmp_eq_u32 vcc, 1, s{sT4}")
        s.i(f"v_cndmask_b32 v{b_}, v{self.vN}, v{b_}, vcc")
        s.i(f"s_mul_i32 s{sT3}, s{sT2}, 21")
        s.i(f"v_add_u32 v{b_}, s{sT3}, v{b_}")
        s.i(f"v_mul_u32_u24 v{b_}, 80, v{b_}")
        s.i(f"v_lshl_add_u32 v{b_}, v{self.vG}, 3, v{b_}")
        s.i(f"v_add_u32 v{b_}, {KVT}, v{b_}")
        s.i(f"v_lshlrev_b32 v{c_}, 3, v{L}")
        s.i(f"v_add_u32 v{c_}, {DUM}, v{c_}")
        s.i(f"v_cndmask_b32 v{self.vSTW}, v{c_}, v{b_}, s[{sM}:{sM+1}]")
        s.i(f"v_cmp_gt_u32 vcc, 2, v{self.vG}")
        s.i(f"v_cndmask_b32 v{self.vSTW2}, v{c_}, v{self.vSTW}, vcc")
        s.i(f"v_lshlrev_b32 v{a}, 4, v0")
        s.i(f"v_add_u32 v{self.vSTR}, {KVT}, v{a}")
        s.i(f"v_mov_b32 v{b_}, {DUM}")
        s.i(f"v_cmp_gt_u32 vcc, 224, v0")
        s.i(f"v_cndmask_b32 v{self.vSTR}, v{b_}, v{self.vSTR}, vcc")
        s.i(f"s_mul_i32 s{sT0}, s{sPJ}, {16*PS}")
        s.i(f"s_lshl_b32 s{sT1}, s{sWAVE}, 8")
        s.i(f"s_add_u32 s{sT2}, s{sT0}, s{sT1}")
        s.i(f"v_mul_u32_u24 v{a}, {PS}, v{self.vG}")
        s.i(f"v_lshl_add_u32 v{a}, v{self.vN}, 4, v{a}")
        s.i(f"v_add_u32 v{self.vH1}, s{sT2}, v{a}")
        s.i(f"v_lshrrev_b32 v{a}, 2, v{L}")
        s.i(f"v_mul_u32_u24 v{a}, {PS}, v{a}")
        s.i(f"v_and_b32 v{b_}, 3, v{L}")
        s.i(f"v_lshl_add_u32 v{a}, v{b_}, 10, v{a}")
        s.i(f"v_add_u32 v{self.vS1}, s{sT0}, v{a}")
        s.i(f"v_and_b32 v{a}, 1, v{self.vN}")
        s.i(f"v_mov_b32 v{b_}, 0x3f80")
        s.i(f"v_lshlrev_b32 v{a}, 4, v{a}")
        s.i(f"v_lshlrev_b32 v{b_}, v{a}, v{b_}")
        s.i(f"v_lshrrev_b32 v{a}, 1, v{self.vN}")
        for k in range(4):
            s.i(f"v_cmp_eq_u32 vcc, {k}, v{a}")
            s.i(f"v_cndmask_b32 v{self.vSEL+k}, 0, v{b_}, vcc")
        s.i(f"v_lshlrev_b32 v{a}, 4, v{self.vN}")
        s.i(f"v_lshl_add_u32 v{a}, v{self.vG}, 3, v{a}")
        s.i(f"s_add_u32 s{sT1}, s{sT1}, {KVT}")
        s.i(f"v_add_u32 v{self.vKVW}, s{sT1}, v{a}")
        s.i(f"v_lshrrev_b32 v{a}, 2, v{self.vN}")
        s.i(f"v_cmp_eq_u32 s[{sONE}:{sONE+1}], 1, v{a}")
        s.i(f"v_lshlrev_b32 v{self.vFLG}, 4, v{L}")
        s.i(f"v_add_u32 v{self.vFLG}, {FLAG}, v{self.vFLG}")

    def setup3(self, s):
        L = self.vLANE
        a, b_, c_, d_, e_ = [self.vT + i for i in range(5)]
        s.i(f"v_lshrrev_b32 v{a}, 1, v{self.vG}")
        s.i(f"v_mul_u32_u24 v{b_}, 1680, v{a}")
        s.i(f"v_and_b32 v{c_}, 3, v{self.vN}")
        s.i(f"v_mul_u32_u24 v{c_}, 80, v{c_}")
        s.i(f"v_add_u32 v{b_}, v{b_}, v{c_}")
        s.i(f"v_add_u32 v{b_}, {KVT}, v{b_}")
        s.i(f"v_mul_u32_u24 v{c_}, 320, v{a}")
        s.i(f"v_add_u32 v{self.vOA}, v{b_}, v{c_}")
        s.i(f"v_xor_b32 v{c_}, 1, v{a}")
        s.i(f"v_mul_u32_u24 v{c_}, 1280, v{c_}")
        s.i(f"v_add_u32 v{self.vOB}, v{b_}, v{c_}")
        s.i(f"v_add_u32 v{self.vOC}, 1600, v{b_}")
        s.i(f"v_lshrrev_b32 v{c_}, 2, v{self.vN}")
        s.i(f"v_cmp_eq_u32 vcc, v{c_}, v{self.vG}")
        s.i(f"v_mov_b32 v{d_}, {ZR}")
        s.i(f"v_cndmask_b32 v{self.vOA}, v{d_}, v{self.vOA}, vcc")
        s.i(f"v_cndmask_b32 v{self.vOB}, v{d_}, v{self.vOB}, vcc")
        s.i(f"v_cndmask_b32 v{self.vOC}, v{d_}, v{self.vOC}, vcc")
        s.i(f"s_lshl_b32 s{sT0}, s{sTB}, 3")
        s.i(f"s_lshl_b32 s{sT1}, s{sWAVE}, 1")
        s.i(f"s_add_u32 s{sT0}, s{sT0}, s{sT1}")
        s.i(f"s_mul_i32 s{sT0}, s{sT0}, 20480")
        s.i(f"s_mul_i32 s{sT1}, s{sPJ}, 1280")
        s.i(f"s_add_u32 s{sT0}, s{sT0}, s{sT1}")
        s.i(f"s_add_u32 s{sT0}, s{sT0}, {OBUF}")
        s.i(f"v_and_b32 v{b_}, 1, v{self.vG}")
        s.i(f"s_movk_i32 s{sT2}, 0x5000")
        s.i(f"v_mul_u32_u24 v{b_}, s{sT2}, v{b_}")
        s.i(f"v_lshl_add_u32 v{b_}, v{self.vN}, 4, v{b_}")
        s.i(f"v_add_u32 v{b_}, s{sT0}, v{b_}")
        s.i(f"v_mul_u32_u24 v{c_}, 768, v{a}")
        s.i(f"v_add_u32 v{self.vOS1}, v{b_}, v{c_}")
        s.i(f"v_add_u32 v{self.vOS2}, 512, v{b_}")
        s.i(f"v_mov_b32 v{c_}, {OOB}")
        s.i(f"v_cmp_gt_u32 vcc, 32, v{L}")
        s.i(f"v_cndmask_b32 v{self.vOS2}, v{c_}, v{self.vOS2}, vcc")
        s.i(f"s_and_b32 s{sT3}, s{sWAVE}, 1")
        s.i(f"v_bfe_u32 v{a}, v{L}, 2, 2")
        s.i(f"v_lshl_add_u32 v{a}, v{self.vG}, 2, v{a}")
        s.i(f"v_mul_u32_u24 v{a}, 160, v{a}")
        s.i(f"v_and_b32 v{b_}, 3, v{L}")
        s.i(f"v_mul_u32_u24 v{b_}, 40, v{b_}")
        s.i(f"s_mul_i32 s{sT0}, s{sT3}, 51200")
        s.i(f"s_add_u32 s{sT0}, s{sT0}, {WO}")
        s.i(f"v_add3_u32 v{self.vWOA}, v{a}, v{b_}, s{sT0}")
        s.i(f"s_lshl_b32 s{sT0}, s{sTB3}, 2")
        s.i(f"s_add_u32 s{sT1}, s{sT0}, s{sWAVE}")
        s.i(f"s_xor_b32 s{sT2}, s{sWAVE}, 1")
        s.i(f"s_add_u32 s{sT2}, s{sT0}, s{sT2}")
        s.i(f"s_mul_i32 s{sT4}, s{sT3}, 10240")
        s.i(f"s_add_u32 s{sT4}, s{sT4}, {OBUF}")
        s.i(f"s_mul_i32 s{sT0}, s{sT1}, 20480")
        s.i(f"s_add_u32 s{sT0}, s{sT0}, s{sT4}")
        s.i(f"v_lshlrev_b32 v{a}, 4, v{L}")
        s.i(f"v_add_u32 v{self.vOF}, s{sT0}, v{a}")
        s.i(f"s_mul_i32 s{sT0}, s{sT2}, 20480")
        s.i(f"s_add_u32 s{sT0}, s{sT0}, s{sT4}")
        s.i(f"v_add_u32 v{self.vOF2}, s{sT0}, v{a}")
        s.i(f"s_lshr_b32 s{sT0}, s{sTB3}, 1")
        s.i(f"s_lshl_b32 s{sT4}, s{sT0}, 4")
        s.i(f"s_lshl_b32 s{sT5}, s{sT3}, 3")
        s.i(f"s_add_u32 s{sT4}, s{sT4}, s{sT5}")
        s.i(f"v_and_b32 v{b_}, 7, v{L}")
        s.i(f"v_add_u32 v{b_}, s{sT4}, v{b_}")
        s.i(f"v_lshlrev_b32 v{b_}, 4, v{b_}")
        s.i(f"s_and_b32 s{sT0}, s{sT1}, 7")
        s.i(f"s_lshr_b32 s{sT0}, s{sT0}, 1")
        s.i(f"s_and_b32 s{sT5}, s{sT2}, 7")
        s.i(f"s_lshr_b32 s{sT5}, s{sT5}, 1")
        s.i(f"v_mov_b32 v{c_}, s{sT0}")
        s.i(f"v_mov_b32 v{d_}, s{sT5}")
        s.i(f"v_bfe_u32 v{e_}, v{L}, 3, 1")
        s.i(f"v_cmp_eq_u32 vcc, 0, v{e_}")
        s.i(f"v_cndmask_b32 v{c_}, v{d_}, v{c_}, vcc")
        s.i(f"v_lshl_add_u32 v{b_}, v{c_}, 2, v{b_}")
        s.i(f"v_add_u32 v{self.vS2}, {FLAG2}, v{b_}")
        s.i(f"s_lshl_b32 s{sT0}, s{sTB}, 4")
        s.i(f"s_add_u32 s{sT0}, s{sT0}, s{sPJ}")
        s.i(f"s_lshl_b32 s{sT0}, s{sT0}, 2")
        s.i(f"s_add_u32 s{sT0}, s{sT0}, s{sWAVE}")
        s.i(f"s_lshl_b32 s{sT0}, s{sT0}, 2")
        s.i(f"s_add_u32 s{sT0}, s{sT0}, {FLAG2}")
        s.i(f"v_mov_b32 v{self.vF2W}, s{sT0}")
        s.i(f"v_mov_b32 v{self.vF2V}, s{sTAG}")
        s.i(f"s_mul_i32 s{sT0}, s{sWAVE}, 5120")
        s.i(f"v_add_u32 v{self.vEXW}, s{sT0}, v{a}")
        s.i(f"s_xor_b32 s{sT0}, s{sWAVE}, 1")
        s.i(f"s_mul_i32 s{sT0}, s{sT0}, 5120")
        s.i(f"v_add_u32 v{self.vEXR}, s{sT0}, v{a}")
        s.i(f"s_lshl_b32 s{sT1}, s{sT1}, 4")
        s.i(f"v_add_u32 v{a}, s{sT1}, v{self.vN}")
        s.i(f"s_movk_i32 s{sT2}, 1280")
        s.i(f"v_mul_u32_u24 v{a}, s{sT2}, v{a}")
        s.i(f"v_mul_u32_u24 v{b_}, 40, v{self.vG}")
        s.i(f"s_mul_i32 s{sT0}, s{sCB}, 160")
        s.i(f"v_add3_u32 v{self.vOUT}, v{a}, v{b_}, s{sT0}")

    def wo_offsets(self, s):
        a, b_, c_, d_ = [self.vT + i for i in range(4)]
        s.i(f"s_movk_i32 s{sT2}, 1280")
        s.i(f"s_mov_b32 s{sT3}, 52429")
        s.i(f"s_mul_i32 s{sT0}, s{sWAVE}, 80")
        for e in range(2):
            s.i(f"v_add_u32 v{a}, s{sT0}, v{self.vLANE}")
            if e: s.i(f"v_add_u32 v{a}, 64, v{a}")
            s.i(f"v_lshrrev_b32 v{b_}, 1, v{a}")
            s.i(f"v_mul_u32_u24 v{b_}, s{sT3}, v{b_}")
            s.i(f"v_lshrrev_b32 v{b_}, 18, v{b_}")
            s.i(f"v_mul_u32_u24 v{c_}, 10, v{b_}")
            s.i(f"v_sub_u32 v{a}, v{a}, v{c_}")
            s.i(f"v_and_b32 v{c_}, 12, v{b_}")
            s.i(f"v_lshlrev_b32 v{c_}, 1, v{c_}")
            s.i(f"v_lshrrev_b32 v{d_}, 4, v{b_}")
            s.i(f"v_lshl_or_b32 v{c_}, v{d_}, 2, v{c_}")
            s.i(f"v_and_b32 v{d_}, 3, v{b_}")
            s.i(f"v_or_b32 v{c_}, v{c_}, v{d_}")
            s.i(f"v_lshlrev_b32 v{a}, 4, v{a}")
            s.i(f"v_mad_u32_u24 v{self.vWOD+e}, v{c_}, s{sT2}, v{a}")

    def frag_reads(self, part, ks, buf, tag):
        out = []
        r = self.vAF + buf * 12
        for t in range(3):
            if part == "V":
                va = self.vPV if t < 2 else self.vP2V
                off = ks * 2560 + (40 * t if t < 2 else 0)
            else:
                va = self.vP0 if t < 2 else self.vP2
                off = R0 + ks * 2560 + (8 * t if t < 2 else 0)
            out.append(S().lds(f"ds_read_b64_tr_b16 v[{r+4*t}:{r+4*t+1}], v{va} offset:{off}", tag))
            out.append(S().lds(f"ds_read_b64_tr_b16 v[{r+4*t+2}:{r+4*t+3}], v{va} offset:{off+1280}", tag))
        return out
    def acc(self, tt, t):
        b = self.vACC + (tt * 3 + t) * 4
        return f"v[{b}:{b+3}]"
    def mfmas(self, ks, buf, first, orient):
        s = S()
        r = self.vAF + buf * 12
        for t in range(3):
            for tt in range(2):
                w = f"v[{r+4*t}:{r+4*t+3}]"
                x = self.xfrag(tt, ks)
                c = "0" if first else self.acc(tt, t)
                if orient == "T": s.i(f"v_mfma_f32_16x16x32_bf16 {self.acc(tt,t)}, {w}, {x}, {c}")
                else:             s.i(f"v_mfma_f32_16x16x32_bf16 {self.acc(tt,t)}, {x}, {w}, {c}")
        return s

    def k_reads(self, lb):
        out = []
        slot = (lb % 3) * 4096
        for ksl in range(2):
            ks = 2 * lb + ksl
            va = self.vXA0 if ksl == 0 else self.vXA1
            for tt in range(2):
                out.append(S().lds(f"ds_read_b128 {self.xfrag(tt,ks)}, v{va} offset:{slot + tt*2048}", f"kr{lb}"))
            out += self.frag_reads("K", ks, (2 * lb + ksl) % 4, f"kr{lb}")
        return out

    def phaseK(self):
        s = S()
        s.c("---- phase K ----")
        def ready(lb):
            tags = [f"x{lb}", f"WK{lb}"]
            if lb == 3: tags += ["phi"]
            if lb == 6: tags += ["pf"]
            self.tick(s, f"K{lb}_a")
            s.vmw(*tags)
            s.bar()
            self.tick(s, f"K{lb}_b")
        ready(0)
        for g in self.k_reads(0): s.extend(g)
        for lb in range(10):
            nxt = []
            if lb + 1 < 10:
                ready(lb + 1)
                nxt = self.k_reads(lb + 1)
            dm = []
            if lb + 3 < 10: dm = self.dma_x(lb + 3) + self.dma_w("K", lb + 3)
            else: dm = self.dma_w("V", lb - 7)
            m = S()
            m.lgw(f"kr{lb}")
            m.extend(self.mfmas(2 * lb, (2 * lb) % 4, lb == 0, "T"))
            m.extend(self.mfmas(2 * lb + 1, (2 * lb + 1) % 4, False, "T"))
            merged = S()
            gi = 0; di = 0; nm = 0
            for op in m:
                merged.append(op)
                if is_mfma(op):
                    nm += 1
                    k = 2 if gi < 8 else 1
                    for _ in range(k):
                        if gi < len(nxt): merged.extend(nxt[gi]); gi += 1
                    if nm % 2 == 0 and di < len(dm): merged.extend(dm[di]); di += 1
            while gi < len(nxt): merged.extend(nxt[gi]); gi += 1
            while di < len(dm): merged.extend(dm[di]); di += 1
            s.extend(merged)
            if lb == 3:
                self.fmap_consts(s)
        s.bar()
        self.stamp(s, "Kgemm")
        if self.dump == "K":
            s.extend(self.dump_regs([f"v{self.vACC+i}" for i in range(24)], "accK"))
            s.extend(self.dump_regs([f"a{self.aF+i}" for i in range(60)], "fc"))
        return s

    def publish_flag(self, s):
        a, b_ = self.vT + 6, self.vT + 7
        s.i(f"s_cmp_lg_u32 s{sWAVE}, 0")
        s.i("s_cbranch_scc1 L_noflag")
        s.i(f"s_lshl_b32 s{sT0}, s2, 2")
        s.i(f"s_add_u32 s{sT0}, s{sT0}, {FLAG}")
        s.i(f"v_mov_b32 v{a}, s{sT0}")
        s.i(f"v_mov_b32 v{b_}, s{sFLAGV}")
        s.i("s_mov_b64 exec, 1")
        s.vm(f"buffer_store_dword v{b_}, v{a}, {srd(S_WS)}, 0 offen sc1", "flag", True)
        s.i("s_mov_b64 exec, -1")
        s.i("L_noflag:")

    def flags_check(self, s):
        t = self.vT + 4
        F = self.vFL
        s.i(f"s_mov_b32 s{sCNT}, 0")
        s.vmw("fl")
        s.i("L_fl_check:")
        s.i(f"v_and_b32 v{t}, v{F}, v{F+1}")
        s.i(f"v_and_b32 v{t+1}, v{F+2}, v{F+3}")
        s.i(f"v_or_b32 v{t+2}, v{F}, v{F+1}")
        s.i(f"v_or_b32 v{t+3}, v{F+2}, v{F+3}")
        s.i(f"v_and_b32 v{t}, v{t}, v{t+1}")
        s.i(f"v_or_b32 v{t+2}, v{t+2}, v{t+3}")
        s.i(f"v_xor_b32 v{t}, s{sTAG}, v{t}")
        s.i(f"v_xor_b32 v{t+2}, s{sTAG}, v{t+2}")
        s.i(f"v_or_b32 v{t}, v{t}, v{t+2}")
        s.i(f"v_cmp_lt_u32 vcc, 15, v{t}")
        s.i("s_nop 1")
        s.i(f"s_or_b32 s{sM}, vcc_lo, vcc_hi")
        s.i(f"s_cmp_eq_u32 s{sM}, 0")
        s.i("s_cbranch_scc1 L_fl_ok")
        s.i(f"s_add_u32 s{sCNT}, s{sCNT}, 1")
        s.i(f"s_cmp_gt_u32 s{sCNT}, {SPIN_MAX}")
        s.i("s_cbranch_scc1 L_fl_ok")
        s.i(f"buffer_load_dwordx4 v[{F}:{F+3}], v{self.vFLG}, {srd(S_WS)}, 0 offen sc1")
        s.i("s_waitcnt vmcnt(0)")
        s.i("s_branch L_fl_check")
        s.i("L_fl_ok:")
        s.i(f"s_and_b32 s{sT0}, s{sGRP}, 3")
        s.i(f"s_cmp_eq_u32 s{sT0}, 1")
        s.i(f"s_cselect_b64 vcc, -1, 0")
        s.i(f"v_cndmask_b32 v{t}, v{F}, v{F+1}, vcc")
        s.i(f"s_cmp_eq_u32 s{sT0}, 2")
        s.i(f"s_cselect_b64 vcc, -1, 0")
        s.i(f"v_cndmask_b32 v{t}, v{t}, v{F+2}, vcc")
        s.i(f"s_cmp_eq_u32 s{sT0}, 3")
        s.i(f"s_cselect_b64 vcc, -1, 0")
        s.i(f"v_cndmask_b32 v{t}, v{t}, v{F+3}, vcc")
        s.i(f"v_cmp_ne_u32 vcc, s{sFLAGV}, v{t}")
        s.i(f"s_lshr_b32 s{sT1}, s{sGRP}, 2")
        s.i(f"s_mov_b32 s{sT2}, 0x55555555")
        s.i(f"s_lshl_b32 s{sT2}, s{sT2}, s{sT1}")
        s.i(f"s_or_b32 s{sT3}, vcc_lo, vcc_hi")
        s.i(f"s_and_b32 s{sT3}, s{sT3}, s{sT2}")
        s.i(f"s_cmp_eq_u32 s{sT3}, 0")
        s.i(f"s_cselect_b32 s{sFAST}, 1, 0")
        if self.opts.get("map", 0) != 0: s.i(f"s_mov_b32 s{sFAST}, 0")

    def fmap_consts(self, s):
        L = self.vLANE
        a, b_, c_, d_ = self.vT, self.vT + 1, self.vT + 2, self.vT + 3
        A0, A1, X0, X1 = self.vT + 4, self.vT + 5, self.vT + 6, self.vT + 7
        s.i(f"v_bfe_u32 v{a}, v{L}, 2, 2")
        s.i(f"v_and_b32 v{b_}, 3, v{L}")
        s.i(f"v_lshrrev_b32 v{c_}, 1, v{self.vG}")
        s.i(f"v_mul_u32_u24 v{d_}, 800, v{c_}")
        s.i(f"v_mul_u32_u24 v{a}, 40, v{a}")
        s.i(f"v_add_u32 v{d_}, v{d_}, v{a}")
        s.i(f"v_add_u32 v{d_}, {WP}, v{d_}")
        s.i(f"v_and_b32 v{a}, 1, v{self.vG}")
        s.i(f"v_mul_u32_u24 v{A0}, 320, v{a}")
        s.i(f"v_add_u32 v{A0}, v{A0}, v{d_}")
        s.i(f"v_add_u32 v{X0}, 640, v{d_}")
        s.i(f"v_mov_b32 v{A1}, {ZR}")
        s.i(f"v_lshrrev_b32 v{d_}, 1, v{b_}")
        s.i(f"v_cmp_eq_u32 s[{sM}:{sM+1}], v{d_}, v{c_}")
        s.i(f"v_and_b32 v{d_}, 1, v{b_}")
        s.i(f"v_cmp_eq_u32 s[{sM2}:{sM2+1}], 0, v{d_}")
        s.i(f"v_cmp_eq_u32 vcc, 0, v{a}")
        s.i(f"s_and_b64 s[{sT0}:{sT0+1}], s[{sM}:{sM+1}], s[{sM2}:{sM2+1}]")
        s.i(f"s_andn2_b64 s[{sT2}:{sT2+1}], s[{sM}:{sM+1}], s[{sM2}:{sM2+1}]")
        s.i(f"s_and_b64 s[{sM}:{sM+1}], s[{sT0}:{sT0+1}], vcc")
        s.i(f"s_and_b64 s[{sM2}:{sM2+1}], s[{sT2}:{sT2+1}], vcc")
        s.i("s_nop 1")
        s.i(f"v_cndmask_b32 v{a}, v{A1}, v{A0}, s[{sT2}:{sT2+1}]")
        s.i(f"v_cndmask_b32 v{A0}, v{A1}, v{A0}, s[{sT0}:{sT0+1}]")
        s.i(f"v_cndmask_b32 v{X1}, v{A1}, v{X0}, s[{sM2}:{sM2+1}]")
        s.i(f"v_cndmask_b32 v{X0}, v{A1}, v{X0}, s[{sM}:{sM+1}]")
        s.i(f"v_mov_b32 v{A1}, v{a}")
        for t in range(5):
            f = self.aF + t * 12
            s.lds(f"ds_read_b64_tr_b16 a[{f}:{f+1}], v{A0} offset:{8*t}", "fc")
            s.lds(f"ds_read_b64_tr_b16 a[{f+2}:{f+3}], v{A0} offset:{8*t+160}", "fc")
            s.lds(f"ds_read_b64_tr_b16 a[{f+4}:{f+5}], v{A1} offset:{8*t}", "fc")
            s.lds(f"ds_read_b64_tr_b16 a[{f+6}:{f+7}], v{A1} offset:{8*t+160}", "fc")
            s.lds(f"ds_read_b64_tr_b16 a[{f+8}:{f+9}], v{X0} offset:{8*t}", "fc")
            s.lds(f"ds_read_b64_tr_b16 a[{f+10}:{f+11}], v{X1} offset:{8*t}", "fc")

    def epi_body(self, which):
        s = S()
        B = self.vB1; PP = self.vPP; E = self.vE
        def A(tt, t, r): return self.vACC + (tt * 3 + t) * 4 + r
        if which == "K": s.lgw("fc")
        for tt in range(2):
            for t in range(2):
                s.i(f"v_cvt_pk_bf16_f32 v{B+4*tt+2*t}, v{A(tt,t,0)}, v{A(tt,t,1)}")
                s.i(f"v_cvt_pk_bf16_f32 v{B+4*tt+2*t+1}, v{A(tt,t,2)}, v{A(tt,t,3)}")
        for tt in range(2):
            s.i(f"v_cvt_pk_bf16_f32 v{B+8+2*tt}, v{A(tt,2,0)}, v{A(tt,2,1)}")
            s.i(f"v_cvt_pk_bf16_f32 v{B+8+2*tt+1}, v{A(tt,2,2)}, v{A(tt,2,3)}")
        for j in range(3):
            for t in range(5):
                f = self.aF + t * 12 + 4 * j
                c = "0" if j == 0 else f"v[{PP+4*t}:{PP+4*t+3}]"
                s.i(f"v_mfma_f32_16x16x32_bf16 v[{PP+4*t}:{PP+4*t+3}], a[{f}:{f+3}], v[{B+4*j}:{B+4*j+3}], {c}")
        if self.dump == "P" + which:
            s.extend(self.dump_regs([f"v{PP+i}" for i in range(20)], "P" + which))
        prefix = s
        s = S()
        mx, mn, sp, sn = self.vT, self.vT + 2, self.vT + 4, self.vT + 6
        s.i(f"v_max3_f32 v{mx}, v{PP}, v{PP+1}, v{PP+2}")
        s.i(f"v_min3_f32 v{mn}, v{PP}, v{PP+1}, v{PP+2}")
        for i in range(3, 19, 2):
            s.i(f"v_max3_f32 v{mx}, v{mx}, v{PP+i}, v{PP+i+1}")
            s.i(f"v_min3_f32 v{mn}, v{mn}, v{PP+i}, v{PP+i+1}")
        s.i(f"v_max_f32 v{mx}, v{mx}, v{PP+19}")
        s.i(f"v_min_f32 v{mn}, v{mn}, v{PP+19}")
        s.i(f"v_mul_f32 v{mx}, s{sL2E}, v{mx}")
        s.i(f"v_mul_f32 v{mn}, s{sL2E}, v{mn}")
        pk = self.opts.get("pk" + which, 1)
        if pk:
            s.i(f"s_mov_b32 s{sT0}, s{sL2E}")
            s.i(f"s_mov_b32 s{sT0+1}, s{sL2E}")
            for i in range(0, 20, 2):
                s.i(f"v_pk_fma_f32 v[{E+i}:{E+i+1}], v[{PP+i}:{PP+i+1}], s[{sT0}:{sT0+1}], v[{mx}:{mx+1}] op_sel_hi:[1,1,0] neg_lo:[0,0,1] neg_hi:[0,0,1]")
                s.i(f"v_pk_fma_f32 v[{E+20+i}:{E+20+i+1}], v[{PP+i}:{PP+i+1}], s[{sT0}:{sT0+1}], v[{mn}:{mn+1}] op_sel_hi:[1,1,0] neg_lo:[1,0,0] neg_hi:[1,0,0]")
        else:
            for i in range(20):
                s.i(f"v_fma_f32 v{E+i}, v{PP+i}, s{sL2E}, -v{mx}")
                s.i(f"v_fma_f32 v{E+20+i}, -v{PP+i}, s{sL2E}, v{mn}")
        for i in range(40): s.i(f"v_exp_f32 v{E+i}, v{E+i}")
        if pk:
            s.i(f"v_pk_add_f32 v[{sp}:{sp+1}], v[{E}:{E+1}], v[{E+2}:{E+3}]")
            s.i(f"v_pk_add_f32 v[{sn}:{sn+1}], v[{E+20}:{E+21}], v[{E+22}:{E+23}]")
            for i in range(4, 20, 2):
                s.i(f"v_pk_add_f32 v[{sp}:{sp+1}], v[{sp}:{sp+1}], v[{E+i}:{E+i+1}]")
                s.i(f"v_pk_add_f32 v[{sn}:{sn+1}], v[{sn}:{sn+1}], v[{E+20+i}:{E+20+i+1}]")
            s.i(f"v_add_f32 v{sp}, v{sp}, v{sp+1}")
            s.i(f"v_add_f32 v{sn}, v{sn}, v{sn+1}")
        else:
            s.i(f"v_add_f32 v{sp}, v{E}, v{E+1}")
            s.i(f"v_add_f32 v{sn}, v{E+20}, v{E+21}")
            for i in range(2, 20):
                s.i(f"v_add_f32 v{sp}, v{sp}, v{E+i}")
                s.i(f"v_add_f32 v{sn}, v{sn}, v{E+20+i}")
        s.i(f"v_rcp_f32 v{sp}, v{sp}")
        s.i(f"v_rcp_f32 v{sn}, v{sn}")
        if pk:
            for i in range(0, 20, 2):
                s.i(f"v_pk_mul_f32 v[{E+i}:{E+i+1}], v[{E+i}:{E+i+1}], v[{sp}:{sp+1}] op_sel_hi:[1,0]")
                s.i(f"v_pk_mul_f32 v[{E+20+i}:{E+20+i+1}], v[{E+20+i}:{E+20+i+1}], v[{sn}:{sn+1}] op_sel_hi:[1,0]")
        else:
            for i in range(20):
                s.i(f"v_mul_f32 v{E+i}, v{E+i}, v{sp}")
                s.i(f"v_mul_f32 v{E+20+i}, v{E+20+i}, v{sn}")
        for i in range(20):
            s.i(f"v_cvt_pk_bf16_f32 v{self.vPHI+i}, v{E+2*i}, v{E+2*i+1}")
            if which == "K" and i % 4 == 3:
                j = i // 4
                s.lds(f"ds_write_b128 v{self.vPKW}, v[{self.vPHI+4*j}:{self.vPHI+4*j+3}] offset:{16*j}", "pkw")
        return prefix, s

    def epiFeat(self, which):
        s = S(); s.c(f"---- feature epilogue {which} ----")
        prefix, rest = self.epi_body(which)
        if which == "K":
            self.publish_flag(s)
            bg = self.dma_w("V", 3)
            if self.opts.get("touch", 1):
                bg.append(S().vm(f"buffer_load_dword v{self.vTCD}, v{self.vTCH}, {srd(S_WS)}, 0 offen", "tch"))
            if self.opts.get("weaveKV", 1) and self.stop >= 3 and not self.dump:
                s.extend(weave_frac(prefix, bg, lo=0.3, hi=0.95))
                self.filler_V = rest
            else:
                body = S(prefix); body.extend(rest)
                s.extend(weave_frac(body, bg + self.dma_w("V", 4) + self.dma_w("V", 5), lo=0.05, hi=0.95))
                self.filler_V = None
        else:
            body = S(prefix); body.extend(rest)
            s.extend(weave_frac(body, self.bg_qe, lo=0.05, hi=0.95))
        self.stamp(s, "epi" + which)
        if self.dump == "PHI" + which:
            s.extend(self.dump_regs([f"v{self.vPHI+i}" for i in range(20)], "PHI" + which))
        return s

    def gemm_resident(self, part, plan, waits=(0, 6, 12, 16), filler=None, per_slot=2, pre=None, skip_first_ready=False):
        s = S()
        orient = "N" if part == "V" else "T"
        filler = list(filler) if filler else []
        state = {"gap": 0}
        def take(n):
            while filler and n > 0:
                if state["gap"] > 0: return
                op = filler[0]
                if op[0] == "gap":
                    state["gap"] = op[1]; filler.pop(0); return
                filler.pop(0)
                s.append(op)
                if op[0] == "i":
                    mn = op[1].split()[0]
                    if mn.startswith("v_mfma"): n -= 4
                    elif mn in ("v_exp_f32", "v_rcp_f32"): n -= 2
                    elif mn.endswith(":"): pass
                    else: n -= 1
                elif op[0] in ("lds", "vm"): n -= 1
        def ready(ks):
            if ks in waits:
                nxt = min([w for w in waits if w > ks] + [20])
                s.vmw(*[f"W{part}{b}" for b in range(ks // 2, nxt // 2)])
                s.bar()
        if not skip_first_ready: ready(0)
        for g in self.frag_reads(part, 0, 0, f"{part}f0"): s.extend(g)
        for g in self.frag_reads(part, 1, 1, f"{part}f1"): s.extend(g)
        if pre: s.extend(pre)
        for ks in range(20):
            self.tick(s, f"{part}{ks:02d}")
            nxt = []
            if ks + 2 < 20:
                ready(ks + 2)
                nxt = self.frag_reads(part, ks + 2, (ks + 2) % 4, f"{part}f{ks+2}")
            s.lgw(f"{part}f{ks}")
            m = self.mfmas(ks, ks % 4, ks == 0, orient)
            j = 0
            extra = list(plan.get(ks, []))
            for op in m:
                s.append(op)
                if j < len(nxt): s.extend(nxt[j])
                j += 1
                used = False
                if extra and j in (2, 4, 6):
                    s.extend(extra.pop(0)); used = True
                if state["gap"] > 0: state["gap"] -= 1
                elif not used: take(per_slot)
            for g in extra: s.extend(g)
        state["gap"] = 0
        while filler:
            op = filler.pop(0)
            if op[0] != "gap": s.append(op)
        return s

    def phaseV(self):
        s = S(); s.c("---- phase V ----")
        fill = getattr(self, "filler_V", None)
        if fill is not None:
            plan = {0: self.dma_w("V", 4), 2: self.dma_w("V", 5), 4: self.dma_w("V", 6), 6: self.dma_w("V", 7), 8: self.dma_w("V", 8), 10: self.dma_w("V", 9)}
            for i, ks in enumerate((12, 14, 16, 18)): plan[ks] = self.dma_w("Q", i)
            self.wq_next = 4
            f = S(); f.append(("gap", 2)); f.extend(fill)
            s.extend(self.gemm_resident("V", plan, waits=(0, 6, 10, 14, 18), filler=f, per_slot=self.opts.get("psV", 2)))
        else:
            plan = {0: self.dma_w("V", 6), 2: self.dma_w("V", 7), 5: self.dma_w("V", 8), 7: self.dma_w("V", 9)}
            for i, ks in enumerate((9, 12, 14, 17, 19)): plan[ks] = self.dma_w("Q", i)
            self.wq_next = 5
            s.extend(self.gemm_resident("V", plan))
        self.stamp(s, "Vgemm")
        if self.dump == "V":
            s.extend(self.dump_regs([f"v{self.vACC+i}" for i in range(24)], "accV"))
        return s

    def kv(self):
        s = S(); s.c("---- kv partial ----")
        B = self.vB1
        def A(tt, t, r): return self.vACC + (tt * 3 + t) * 4 + r
        KA = 168; BF = 216; D = self.vPP; R = 160
        s.i(f"v_mov_b32 v{self.vT}, 0x3f803f80")
        s.i(f"v_cmp_gt_u32 vcc, 210, v0")
        s.i(f"s_mov_b64 s[{sM2}:{sM2+1}], vcc")
        for t in (2, 0, 1):
            for tt in range(2):
                s.i(f"v_cvt_pk_bf16_f32 v{B+4*t+2*tt}, v{A(tt,t,0)}, v{A(tt,t,1)}")
                s.i(f"v_cvt_pk_bf16_f32 v{B+4*t+2*tt+1}, v{A(tt,t,2)}, v{A(tt,t,3)}")
            if t == 2:
                for i in range(4):
                    s.i(f"v_cndmask_b32 v{B+8+i}, v{B+8+i}, v{self.vT}, s[{sONE}:{sONE+1}]")
            s.lds(f"ds_write_b128 v{self.vBVW}, v[{B+4*t}:{B+4*t+3}] offset:{t*1024}", "bvw")
        weave_q = self.opts.get("weaveKVQ", 1) and self.stop >= 5 and not self.dump
        if weave_q:
            s.vmw("WQ0", "WQ1", "WQ2")
        s.lg0()
        self.tick(s, "kv_a")
        s.bar()
        self.tick(s, "kv_b")
        r_ = S()
        for v in range(4):
            r_.lds(f"ds_read_b128 v[{BF+4*v}:{BF+4*v+3}], v{self.vBVR} offset:{v*3072}", f"kvr{v}")
            for mt in range(3):
                r = KA + (v * 3 + mt) * 4
                off = v * 5120 + mt * 32
                r_.lds(f"ds_read_b64_tr_b16 v[{r}:{r+1}], v{self.vPKR} offset:{off}", f"kvr{v}")
                r_.lds(f"ds_read_b64_tr_b16 v[{r+2}:{r+3}], v{self.vPKR} offset:{off+2560}", f"kvr{v}")
        r_.append(("gap", 1))
        for v in range(4):
            r_.lgw(f"kvr{v}")
            for mt in range(3):
                r = KA + (v * 3 + mt) * 4
                c = "0" if v == 0 else f"v[{D+4*mt}:{D+4*mt+3}]"
                r_.i(f"v_mfma_f32_16x16x32_bf16 v[{D+4*mt}:{D+4*mt+3}], v[{r}:{r+3}], v[{BF+4*v}:{BF+4*v+3}], {c}")
        r_.append(("gap", 2))
        for mt in range(3):
            r_.i(f"v_cvt_pk_bf16_f32 v{B+2*mt}, v{D+4*mt}, v{D+4*mt+1}")
            r_.i(f"v_cvt_pk_bf16_f32 v{B+2*mt+1}, v{D+4*mt+2}, v{D+4*mt+3}")
            va = self.vSTW if mt < 2 else self.vSTW2
            r_.lds(f"ds_write_b64 v{va}, v[{B+2*mt}:{B+2*mt+1}] offset:{32*mt}", "stw")
        r_.append(("gap", 2))
        r_.lgw("stw")
        r_.bar()
        r_.lds(f"ds_read_b128 v[{R}:{R+3}], v{self.vSTR}", "str")
        r_.append(("gap", 3))
        r_.lgw("str")
        for i in range(4): r_.i(f"v_cndmask_b32 v{R+i}, 0, v{R+i}, s[{sM2}:{sM2+1}]")
        r_.vm(f"buffer_store_dwordx4 v[{R}:{R+3}], v{self.vPST}, {srd(S_WS)}, 0 offen sc1", "pst")
        self.tick(r_, "kv_pub")
        if weave_q:
            self.filler_Q = r_
        else:
            self.filler_Q = None
            s.extend([op for op in r_ if op[0] != "gap"])
            for lb in range(self.wq_next, 7):
                for x in self.dma_w("Q", lb): s.extend(x)
            self.wq_next = 7
        self.stamp(s, "kvpub")
        if self.dump == "KV": s.vm0()
        return s

    def hop1_load_groups(self, tag):
        H = self.aH
        gs = []
        first = True
        for j in range(4):
            opt = (j == 3)
            for pq in range(4):
                g = S()
                if first:
                    for q in range(1, 4): g.i(f"s_mov_b32 s{sT0+q}, {q*4*PS}")
                    first = False
                if opt:
                    lab = f"L_h1s_{tag}_{pq}"
                    g.i(f"s_cmp_ge_u32 s{sWAVE}, 2")
                    g.i(f"s_cbranch_scc1 {lab}")
                r = H + (j * 4 + pq) * 4
                so = "0" if pq == 0 else f"s{sT0+pq}"
                g.vm(f"buffer_load_dwordx4 a[{r}:{r+3}], v{self.vH1}, {srd(S_WS)}, {so} offen offset:{j*1024} sc1", tag, opt)
                if opt: g.i(f"{lab}:")
                gs.append(g)
        return gs

    def phaseQ(self):
        s = S(); s.c("---- phase Q ----")
        F = self.vFL
        fl = S().vm(f"buffer_load_dwordx4 v[{F}:{F+3}], v{self.vFLG}, {srd(S_WS)}, 0 offen sc1", "fl")
        fill = self.filler_Q
        plan = {}
        if fill is not None:
            plan = {0: self.dma_w("Q", 4) + self.dma_w("Q", 5), 2: self.dma_w("Q", 6), 4: self.dma_w("Q", 7), 6: [fl] + self.dma_w("Q", 8), 8: self.dma_w("Q", 9),
                    9: self.dma_wo(17, "woC")}
            self.bg_qe = [x for ks in (18, 19, 0, 1, 2, 3) for x in self.dma_wo(ks, "woA")]
            self.wo_h1 = (4, 5); self.wo_o = (6, 7, 8, 9); self.wo_late = (10, 11, 12, 13, 14, 15, 16)
            main = self.gemm_resident("Q", plan, filler=fill, per_slot=self.opts.get("psQ", 2), skip_first_ready=True)
        else:
            plan = {0: [fl] + self.dma_w("Q", 7), 2: self.dma_w("Q", 8), 5: self.dma_w("Q", 9), 7: self.dma_wo(17, "woC"), 8: self.dma_wo(18, "woC"), 9: self.dma_wo(19, "woC")}
            self.bg_qe = [x for ks in (0, 1, 2, 3, 4, 5) for x in self.dma_wo(ks, "woA")]
            self.wo_h1 = (6, 7); self.wo_o = (8, 9, 10, 11); self.wo_late = (12, 13, 14, 15, 16)
            main = self.gemm_resident("Q", plan)
        h1 = self.hop1_load_groups("h1") if self.stop >= 7 else []
        idx = [i for i, op in enumerate(main) if is_mfma(op) and self.is_gemm_mfma(op)]
        cut = idx[self.opts.get("h1at", 65)] + 1
        head, tail = S(main[:cut]), S(main[cut:])
        s.extend(head)
        if self.stop >= 7: self.flags_check(s)
        tail, left = weave(tail, h1, every=3, start=1)
        s.extend(tail)
        for g in left: s.extend(g)
        self.stamp(s, "Qgemm")
        if self.dump == "Q":
            s.extend(self.dump_regs([f"v{self.vACC+i}" for i in range(24)], "accQ"))
        return s
    def is_gemm_mfma(self, op):
        d = op[1].split()[1]
        lo = int(d[2:d.index(":")])
        return self.vACC <= lo < self.vACC + 24

    def hop1(self):
        s = S(); s.c("---- hop1: gather + reduce kv partials ----")
        H = self.aH
        D = self.vAF
        t = self.vT
        s.i(f"s_mov_b32 s{sCNT}, 0")
        self.tick(s, "h1_a")
        s.vmw("h1")
        self.tick(s, "h1_b")
        s.i("L_h1_check:")
        s.i(f"s_cmp_lt_u32 s{sWAVE}, 2")
        s.i("s_cbranch_scc1 L_h1_nozero")
        for i in range(16): s.i(f"v_accvgpr_write_b32 a{H+48+i}, 0")
        s.i("s_nop 1")
        s.i("L_h1_nozero:")
        for pq in range(4):
            for j in range(4):
                r = H + (j * 4 + pq) * 4
                c = "0" if pq == 0 else f"v[{D+4*j}:{D+4*j+3}]"
                s.i(f"v_mfma_f32_16x16x32_bf16 v[{D+4*j}:{D+4*j+3}], v[{self.vSEL}:{self.vSEL+3}], a[{r}:{r+3}], {c}")
        s.i("s_nop 7")
        s.i(f"v_pk_add_f32 v[{t}:{t+1}], v[{D}:{D+1}], v[{D+2}:{D+3}]")
        s.i(f"v_pk_add_f32 v[{t+2}:{t+3}], v[{D+4}:{D+5}], v[{D+6}:{D+7}]")
        for i in range(8, 16, 4):
            s.i(f"v_pk_add_f32 v[{t}:{t+1}], v[{t}:{t+1}], v[{D+i}:{D+i+1}]")
            s.i(f"v_pk_add_f32 v[{t+2}:{t+3}], v[{t+2}:{t+3}], v[{D+i+2}:{D+i+3}]")
        s.i(f"v_pk_add_f32 v[{t}:{t+1}], v[{t}:{t+1}], v[{t+2}:{t+3}]")
        s.i(f"v_cmp_u_f32 vcc, v{t}, v{t+1}")
        s.i("s_nop 1")
        s.i(f"s_or_b32 s{sM}, vcc_lo, vcc_hi")
        s.i(f"s_cmp_eq_u32 s{sM}, 0")
        s.i("s_cbranch_scc1 L_h1_ok")
        s.i("L_h1_poll:")
        s.i(f"s_add_u32 s{sCNT}, s{sCNT}, 1")
        s.i(f"s_cmp_gt_u32 s{sCNT}, {SPIN_MAX}")
        s.i("s_cbranch_scc1 L_h1_ok")
        s.i(f"buffer_load_dword v{self.vSM}, v{self.vS1}, {srd(S_WS)}, 0 offen sc1")
        s.i("s_waitcnt vmcnt(0)")
        s.i(f"v_cmp_eq_u32 vcc, -1, v{self.vSM}")
        s.i("s_nop 1")
        s.i(f"s_or_b32 s{sT0}, vcc_lo, vcc_hi")
        s.i(f"s_cmp_lg_u32 s{sT0}, 0")
        s.i("s_cbranch_scc1 L_h1_poll")
        for g in self.hop1_load_groups("h1r"): s.extend(g)
        s.i("s_waitcnt vmcnt(0)")
        s.i("s_branch L_h1_check")
        s.i("L_h1_ok:")
        self.tick(s, "h1_c")
        s.call(lambda: setattr(self.P, "vm", [x for x in self.P.vm if x[0] not in ("h1r",)]))
        bg = [x for ks in self.wo_h1 for x in self.dma_wo(ks, "woB")]
        w = S()
        for j in range(4):
            w.i(f"v_cvt_pk_bf16_f32 v{t+2*(j&1)}, v{D+4*j}, v{D+4*j+1}")
            w.i(f"v_cvt_pk_bf16_f32 v{t+2*(j&1)+1}, v{D+4*j+2}, v{D+4*j+3}")
            opt = (j == 3)
            if opt:
                w.i(f"s_cmp_ge_u32 s{sWAVE}, 2")
                w.i("s_cbranch_scc1 L_h1_skipw")
            w.i("s_mov_b64 exec, 0xffffffff")
            w.lds(f"ds_write_b64 v{self.vKVW}, v[{t+2*(j&1)}:{t+2*(j&1)+1}] offset:{j*1024}", "kvw")
            w.i("s_mov_b64 exec, -1")
            if opt: w.i("L_h1_skipw:")
        s.extend(w)
        for x in bg: s.extend(x)
        s.lg0()
        s.bar()
        self.bg_o = [x for ks in self.wo_o for x in self.dma_wo(ks, "woB")]
        self.bg_late = [x for ks in self.wo_late for x in self.dma_wo(ks, "woL")]
        self.stamp(s, "hop1")
        return s

    def ocomp(self):
        s = S(); s.c("---- o = phi_q kv / den ----")
        AO = 64
        def reads(i):
            out = []
            for t in range(6):
                r = AO + (t * 5 + i) * 4
                if t < 4: va, off = self.vOA, 320 * t + 16 * i
                elif t == 4: va, off = self.vOB, 16 * i
                else: va, off = self.vOC, 16 * i
                out.append(S().lds(f"ds_read_b128 a[{r}:{r+3}], v{va} offset:{off}", f"oa{i}"))
            return out
        D = self.vAF
        for g in reads(0) + reads(1): s.extend(g)
        bg = list(self.bg_o); self.bg_o = []
        for i in range(5):
            s.lgw(f"oa{i}")
            nxt = reads(i + 2) if i + 2 < 5 else []
            for t in (5, 0, 1, 2, 3, 4):
                r = AO + (t * 5 + i) * 4
                c = "0" if i == 0 else f"v[{D+4*t}:{D+4*t+3}]"
                s.i(f"v_mfma_f32_16x16x32_bf16 v[{D+4*t}:{D+4*t+3}], a[{r}:{r+3}], v[{self.vPHI+4*i}:{self.vPHI+4*i+3}], {c}")
                if nxt: s.extend(nxt.pop(0))
                elif bg and i < 3: s.extend(bg.pop(0))
            if bg and i < 3: s.extend(bg.pop(0));
            if bg and i < 3: s.extend(bg.pop(0))
        for g in bg: s.extend(g)
        self.tick(s, "o_m")
        t0 = self.vT
        s.i(f"v_add_f32 v{t0}, 0x358637bd, v{D+20}")
        s.i(f"v_rcp_f32 v{t0}, v{t0}")
        O = self.vO
        for i in range(0, 20, 2): s.i(f"v_pk_mul_f32 v[{D+i}:{D+i+1}], v[{D+i}:{D+i+1}], v[{t0}:{t0+1}] op_sel_hi:[1,0]")
        for i in (8, 9, 0, 1, 2, 3, 4, 5, 6, 7): s.i(f"v_cvt_pk_bf16_f32 v{O+i}, v{D+2*i}, v{D+2*i+1}")
        s.i(f"v_permlane32_swap_b32 v{O+8}, v{O+10}")
        s.i(f"v_permlane32_swap_b32 v{O+9}, v{O+11}")
        for mode in ((0, 1) if self.fast else (0,)):
            fl = "" if mode == 1 else " sc1"
            if self.fast:
                if mode == 0:
                    s.i(f"s_cmp_eq_u32 s{sFAST}, 1")
                    s.i("s_cbranch_scc1 L_ost_fast")
                else:
                    s.i("s_branch L_ost_done")
                    s.i("L_ost_fast:")
            opt = (mode == 1)
            s.vm(f"buffer_store_dwordx4 v[{O}:{O+3}], v{self.vOS1}, {srd(S_WS)}, 0 offen{fl}", "ost", opt)
            s.vm(f"buffer_store_dwordx4 v[{O+4}:{O+7}], v{self.vOS1}, {srd(S_WS)}, 0 offen offset:256{fl}", "ost", opt)
            s.vm(f"buffer_store_dwordx4 v[{O+8}:{O+11}], v{self.vOS2}, {srd(S_WS)}, 0 offen{fl}", "ost", opt)
            s.i("s_waitcnt vmcnt(0)")
            s.i("s_mov_b64 exec, 1")
            s.vm(f"buffer_store_dword v{self.vF2V}, v{self.vF2W}, {srd(S_WS)}, 0 offen{fl}", "of2", True)
            s.i("s_mov_b64 exec, -1")
        if self.fast: s.i("L_ost_done:")
        s.call(lambda: setattr(self.P, "vm", [x for x in self.P.vm if x[0] == "of2"]))
        self.stamp(s, "opub")
        for x in self.bg_late: s.extend(x)
        if self.dump == "O": s.vm0()
        return s

    def of_load_groups(self, tag):
        F = self.vF
        gs = []
        for k in range(10):
            for tl in range(2):
                g = S()
                if k == 0 and tl == 0:
                    g.i(f"s_movk_i32 s{sT1}, 4096")
                    g.i(f"s_movk_i32 s{sT2}, 8192")
                va = self.vOF if tl == 0 else self.vOF2
                r = F + (k * 2 + tl) * 4
                so = "0" if k < 4 else f"s{sT0 + k//4}"
                g.vm(f"buffer_load_dwordx4 v[{r}:{r+3}], v{va}, {srd(S_WS)}, {so} offen offset:{(k%4)*1024} sc1", f"{tag}{k}")
                gs.append(g)
        return gs

    def wo_reads(self, k):
        out = []
        for ct in range(5):
            r = (k * 5 + ct) * 4
            off = k * 5120 + 8 * ct
            out.append(S().lds(f"ds_read_b64_tr_b16 a[{r}:{r+1}], v{self.vWOA} offset:{off}", f"wof{k}"))
            out.append(S().lds(f"ds_read_b64_tr_b16 a[{r+2}:{r+3}], v{self.vWOA} offset:{off+2560}", f"wof{k}"))
        return out

    def p3(self):
        s = S(); s.c("---- P3: out = o @ wo ----")
        F = self.vF
        self.tick(s, "P3_a")
        s.vmw("woL")
        s.bar()
        self.tick(s, "P3_b")
        NPRE = self.opts.get("npre", 3)
        for k in range(NPRE):
            for g in self.wo_reads(k): s.extend(g)
        s.i(f"s_mov_b32 s{sCNT}, 0")
        s.i("L_h2_poll:")
        s.i(f"buffer_load_dword v{self.vSM}, v{self.vS2}, {srd(S_WS)}, 0 offen sc1")
        s.i(f"s_add_u32 s{sCNT}, s{sCNT}, 1")
        s.i(f"s_cmp_gt_u32 s{sCNT}, {SPIN_MAX}")
        s.i("s_cbranch_scc1 L_h2_go")
        s.i("s_waitcnt vmcnt(0)")
        s.i(f"v_cmp_ne_u32 vcc, s{sTAG}, v{self.vSM}")
        s.i("s_nop 1")
        s.i(f"s_and_b32 s{sT0}, vcc_lo, 0xffff")
        s.i("s_cbranch_scc1 L_h2_poll")
        s.i("L_h2_go:")
        s.call(lambda: setattr(self.P, "vm", []))
        self.tick(s, "P3_seen")
        lg = self.of_load_groups("of")
        npre = 8
        for g in lg[:npre]: s.extend(g)
        rest = lg[npre:]
        ACC = self.vACC
        for k in range(10):
            s.vmw(f"of{k}")
            s.lgw(f"wof{k}")
            nxt = self.wo_reads(k + NPRE) if k + NPRE < 10 else []
            order = [(tl, ct) for tl in (0, 1) for ct in range(5)] if k < 9 else [(tl, ct) for tl in (1, 0) for ct in range(5)]
            n = 0
            for (tl, ct) in order:
                r = (k * 5 + ct) * 4
                d = ACC + (tl * 5 + ct) * 4
                f = F + (k * 2 + tl) * 4
                c = "0" if k == 0 else f"v[{d}:{d+3}]"
                s.i(f"v_mfma_f32_16x16x32_bf16 v[{d}:{d+3}], a[{r}:{r+3}], v[{f}:{f+3}], {c}")
                n += 1
                if nxt: s.extend(nxt.pop(0))
                if n in (3, 7) and rest: s.extend(rest.pop(0))
                if k == 9 and n >= 8:
                    ct2 = n - 8
                    d2 = ACC + (5 + ct2) * 4
                    s.lds(f"ds_write_b128 v{self.vEXW}, v[{d2}:{d2+3}] offset:{R0 + ct2*1024}", "exw")
        self.stamp(s, "gemm3")
        for ct2 in (3, 4):
            d2 = ACC + (5 + ct2) * 4
            s.lds(f"ds_write_b128 v{self.vEXW}, v[{d2}:{d2+3}] offset:{R0 + ct2*1024}", "exw")
        s.lg0()
        s.bar()
        X = 104
        for ct in range(5):
            s.lds(f"ds_read_b128 v[{X+4*ct}:{X+4*ct+3}], v{self.vEXR} offset:{R0 + ct*1024}", f"exr{ct}")
        O = self.vO
        fl = self.opts.get("outfl", 0)
        fls = {0: "", 1: " sc1", 2: " nt", 3: " sc0 sc1"}[fl]
        for ct in range(5):
            s.lgw(f"exr{ct}")
            for i in (4*ct, 4*ct+2): s.i(f"v_pk_add_f32 v[{ACC+i}:{ACC+i+1}], v[{ACC+i}:{ACC+i+1}], v[{X+i}:{X+i+1}]")
            for i in (2*ct, 2*ct+1): s.i(f"v_cvt_pk_bf16_f32 v{O+i}, v{ACC+2*i}, v{ACC+2*i+1}")
            if ct == 1: s.vm(f"buffer_store_dwordx4 v[{O}:{O+3}], v{self.vOUT}, {srd(S_OUT)}, 0 offen{fls}", "out")
            if ct == 3: s.vm(f"buffer_store_dwordx4 v[{O+4}:{O+7}], v{self.vOUT}, {srd(S_OUT)}, 0 offen offset:16{fls}", "out")
        s.vm(f"buffer_store_dwordx2 v[{O+8}:{O+9}], v{self.vOUT}, {srd(S_OUT)}, 0 offen offset:32{fls}", "out")
        s.i(f"s_or_b32 s{sT0}, s2, s{sWAVE}")
        s.i(f"s_cmp_lg_u32 s{sT0}, 0")
        s.i("s_cbranch_scc1 L_noep")
        s.i(f"v_mov_b32 v{self.vT}, {EPOCH}")
        s.i(f"v_mov_b32 v{self.vT+1}, s{sEPN}")
        s.i("s_mov_b64 exec, 1")
        s.vm(f"buffer_store_dword v{self.vT+1}, v{self.vT}, {srd(S_WS)}, 0 offen sc1", "ep", True)
        s.i("s_mov_b64 exec, -1")
        s.i("L_noep:")
        self.stamp(s, "out")
        return s

    def finish(self):
        P = self.P
        if self.profile:
            P.vm_drain()
            ins = "s_memtime" if self.ticks is not None else "s_memrealtime"
            P(f"{ins} s[100:101]"); self.stampnames.append("end"); nlast = self.nstamp; self.nstamp += 1
            P("s_waitcnt lgkmcnt(0)")
            P(f"s_lshl_b32 s{sT0}, s2, 2")
            P(f"s_add_u32 s{sT0}, s{sT0}, s{sWAVE}")
            P(f"s_lshl_b32 s{sT0}, s{sT0}, 7")
            P(f"s_add_u32 s{sT0}, s{sT0}, {STAMPS}")
            P("v_mov_b32 v2, 0")
            P("s_mov_b64 exec, 1")
            for i in range(16):
                if i < self.nstamp:
                    r = 100 if i == nlast else stamp_reg(i)
                    P(f"v_mov_b32 v4, s{r}")
                    P(f"v_mov_b32 v5, s{r+1}")
                else:
                    P("v_mov_b32 v4, 0"); P("v_mov_b32 v5, 0")
                P(f"buffer_store_dwordx2 v[4:5], v2, {srd(S_WS)}, s{sT0} offen offset:{8*i}")
                P("s_nop 1")
            P("s_waitcnt vmcnt(0)")
        P("L_end:")
        P("s_endpgm")

HEADER = f"""; hedgehog linear attention: fused persistent kernel (K/V/Q projections, feature maps, kv reduction, output projection)
; @launch grid=(256,1,1) block=(256,1,1) lds={LDS_SIZE}
.amdgcn_target "amdgcn-amd-amdhsa--gfx950"
.text
.globl {NAME}_kernel
.p2align 8
.type {NAME}_kernel,@function
{NAME}_kernel:
"""
FOOTER = f"""
.section .rodata,"a"
.p2align 6
.amdhsa_kernel {NAME}_kernel
  .amdhsa_next_free_vgpr 512
  .amdhsa_next_free_sgpr 102
  .amdhsa_accum_offset 256
  .amdhsa_group_segment_fixed_size 0
  .amdhsa_kernarg_size 56
  .amdhsa_user_sgpr_count 2
  .amdhsa_user_sgpr_kernarg_segment_ptr 1
  .amdhsa_system_sgpr_workgroup_id_x 1
  .amdhsa_float_denorm_mode_32 3
  .amdhsa_float_denorm_mode_16_64 3
.end_amdhsa_kernel
"""

if __name__ == "__main__":
    ap = argparse.ArgumentParser()
    ap.add_argument("-o", default="k.s")
    ap.add_argument("--stop", type=int, default=99)
    ap.add_argument("--profile", action="store_true")
    ap.add_argument("--dump", default=None)
    ap.add_argument("--norot", action="store_true")
    ap.add_argument("--nofast", action="store_true")
    ap.add_argument("--ticks", default=None)
    ap.add_argument("--opt", action="append", default=[])
    a = ap.parse_args()
    opts = {}
    for o in a.opt:
        k, v = o.split("="); opts[k] = int(v)
    dbg = a.profile or a.dump
    g = Gen(stop=a.stop, profile=a.profile, dump=a.dump, norot=a.norot, ticks=a.ticks.split(',') if a.ticks else None,
            ws_size=0x4000000 if dbg else 0x400000, fast=not a.nofast, opts=opts)
    P = g.build()
    body, nn = P.render()
    open(a.o, "w").write(HEADER + body + FOOTER)
    print("nops inserted:", nn, "dump info:", g.dumpinfo, "stamps:", ",".join(g.stampnames))
```
